```python
import torch

def _softmax(x, axis=-1):
    return torch.softmax(x, dim=axis)
def _gelu(x):
    return torch.nn.functional.gelu(x, approximate="tanh")
def _silu(x):
    return torch.nn.functional.silu(x)
def _sigmoid(x):
    return torch.sigmoid(x)
def _layernorm(x, axis=-1, eps=1e-5):
    m = x.mean(dim=axis, keepdim=True)
    v = x.var(dim=axis, keepdim=True, unbiased=False)
    return (x - m) / torch.sqrt(v + eps)
def _scatter_add(tgt, idx, src, axis=0):
    return tgt.clone().index_add_(axis, idx, src)
def _segment_sum(src, seg, n):
    out = torch.zeros((n,) + src.shape[1:], dtype=src.dtype)
    return out.index_add_(0, seg, src)
def _pad(x, pw):
    flat = tuple(v for pair in reversed(pw) for v in pair)
    return torch.nn.functional.pad(x, flat)

kernel_name = 'sequential_preLN__mha_block_cached__glu_gated_geglu__decode'

def setup_inputs():

    _w = (lambda a: (lambda t: t.to(torch.bfloat16) if t.is_floating_point() else t)(torch.as_tensor(a)))
    def _A_setup():
        B, Sq, D = 2, 1, 576
        H, Sk, Dh = 32, 8192, 128
        return {
            "x": _w((lambda *s: torch.randn(*s, dtype=torch.bfloat16) * 0.05)(B, Sq, D)),
            "k_cache": _w((lambda *s: torch.randn(*s, dtype=torch.bfloat16) * 1.6)(B, H, Sk, Dh)),
            "v_cache": _w((lambda *s: torch.randn(*s, dtype=torch.bfloat16) * 0.8)(B, H, Sk, Dh)),
            "wq": _w((lambda *s: torch.randn(*s, dtype=torch.bfloat16) * 1.6)(D, H * Dh) * (D ** -0.5)),
            "wo": _w((lambda *s: torch.randn(*s, dtype=torch.bfloat16) * 0.8)(H * Dh, D) * ((H * Dh) ** -0.5)),
        }
    _A_in = _A_setup()

    def _B_setup():
        B, S, Dm, Df = 2, 1, 576, 4608
        return {
            "x": _w((lambda *s: torch.randn(*s, dtype=torch.bfloat16) * 0.05)(B, S, Dm)),
            "w_gate": _w((lambda *s: torch.randn(*s, dtype=torch.bfloat16) * 0.8)(Dm, Df) * (Dm ** -0.5)),
            "w_up": _w((lambda *s: torch.randn(*s, dtype=torch.bfloat16) * 0.8)(Dm, Df) * (Dm ** -0.5)),
            "w_down": _w((lambda *s: torch.randn(*s, dtype=torch.bfloat16) * 0.8)(Df, Dm) * (Df ** -0.5)),
        }
    _B_in = _B_setup()

    return {
        "A_x": _A_in["x"],
        "A_k_cache": _A_in["k_cache"],
        "A_v_cache": _A_in["v_cache"],
        "A_wq": _A_in["wq"],
        "A_wo": _A_in["wo"],
        "B_x": _B_in["x"],
        "B_w_gate": _B_in["w_gate"],
        "B_w_up": _B_in["w_up"],
        "B_w_down": _B_in["w_down"],
    }

def reference(A_x, A_k_cache, A_v_cache, A_wq, A_wo, B_x, B_w_gate, B_w_up, B_w_down):
    def _A_ref(x, k_cache, v_cache, wq, wo):
        B, Sq, D = x.shape
        H, Dh = 32, 128
        q = (lambda x, *d: x.permute(*d))((x @ wq).reshape(B, Sq, H, Dh), 0, 2, 1, 3)
        scores = torch.einsum("bhqd,bhkd->bhqk", q, k_cache) * (Dh ** -0.5)
        p = _softmax(scores, axis=-1)
        o = torch.einsum("bhqk,bhkd->bhqd", p, v_cache)
        return (lambda x, *d: x.permute(*d))(o, 0, 2, 1, 3).reshape(B, Sq, H * Dh) @ wo

    def _B_ref(x, w_gate, w_up, w_down):
        g = torch.einsum("bsd,df->bsf", x, w_gate)
        u = torch.einsum("bsd,df->bsf", x, w_up)
        h = _gelu(g) * u
        return torch.einsum("bsf,fd->bsd", h, w_down)

    x = A_x
    h = x + _A_ref(_layernorm(x, axis=-1), A_k_cache, A_v_cache, A_wq, A_wo)
    h2 = h + _B_ref(_layernorm(h, axis=-1), B_w_gate, B_w_up, B_w_down)
    return h2
```

```python
import re, sys

REG = re.compile(r"\b([vs])\[(\d+):(\d+)\]|\b([vs])(\d+)\b|\b(vcc|exec|m0)\b")
TRANS = ("v_exp_", "v_log_", "v_rcp_", "v_rsq_", "v_sqrt_", "v_sin_", "v_cos_")


def regs_of(tok):
    out = []
    for m in REG.finditer(tok):
        if m.group(1):
            out.append(frozenset(f"{m.group(1)}{i}" for i in range(int(m.group(2)), int(m.group(3)) + 1)))
        elif m.group(4):
            out.append(frozenset([f"{m.group(4)}{m.group(5)}"]))
        else:
            out.append(frozenset([m.group(6)]))
    return out


class I:
    def __init__(self, text):
        self.text = text
        t = text.split(";")[0].strip()
        self.label = None
        self.op = None
        self.w = set(); self.r = set()
        self.cls = None
        self.states = 0
        self.target = None
        self.dpp = False; self.trans = False; self.perm = False; self.rdlane = False
        self.lds = False; self.wide = frozenset(); self.ab = frozenset(); self.c = frozenset(); self.d = frozenset()
        if not t or t.startswith("."):
            return
        if t.endswith(":"):
            self.label = t[:-1]
            return
        parts = t.split(None, 1)
        op = parts[0]
        rest = parts[1] if len(parts) > 1 else ""
        self.op = op
        self.states = 1
        R = regs_of(rest)
        U = lambda xs: set().union(*xs) if xs else set()
        if op == "s_nop":
            self.states = int(rest.strip(), 0) + 1
            self.cls = "nop"
        elif op.startswith("s_"):
            self.cls = "salu"
            if op.startswith("s_cbranch") or op == "s_branch":
                self.target = rest.strip()
                self.cls = "br"
            elif op.startswith(("s_cmp", "s_waitcnt", "s_barrier", "s_setprio", "s_sleep", "s_endpgm", "s_bitcmp")):
                self.r = U(R)
            elif op.startswith(("s_load", "s_memrealtime", "s_memtime")):
                self.cls = "smem"
                self.w = set(R[0]); self.r = U(R[1:])
            else:
                self.w = set(R[0]); self.r = U(R[1:])
        elif op.startswith("v_mfma"):
            self.cls = "mfma"
            self.d = R[0]; self.w = set(R[0])
            self.ab = R[1] | R[2]
            self.c = R[3] if len(R) > 3 else frozenset()
            self.r = set(self.ab | self.c)
            assert "16x16x32" in op or "4x4x4" in op or "16x16x16" in op or "32x32x16" in op, op
            self.passes = 8 if "32x32" in op else (2 if "4x4x4" in op else 4)
        elif op.startswith("v_"):
            self.cls = "valu"
            self.dpp = "_dpp" in op or "quad_perm" in rest or "row_" in rest
            self.trans = op.startswith(TRANS)
            if op.startswith("v_permlane") and "swap" in op:
                self.perm = True
                self.w = U(R); self.r = U(R)
            elif op.startswith(("v_readfirstlane", "v_readlane")):
                self.rdlane = True
                self.w = set(R[0]); self.r = U(R[1:])
            elif op.startswith(("v_add_co", "v_sub_co", "v_addc_co", "v_subb_co")):
                self.w = set(R[0]) | set(R[1]); self.r = U(R[2:])
            else:
                self.w = set(R[0]); self.r = U(R[1:])
                if op.startswith(("v_fmac", "v_mac", "v_pk_fmac", "v_dot2c", "v_writelane")) or self.dpp:
                    self.r |= set(R[0])
                if op.startswith("v_cmpx"):
                    self.w |= {"exec"}
        elif op.startswith(("buffer_", "global_", "flat_")):
            self.cls = "vmem"
            self.lds = bool(re.search(r"\blds\b", rest)) or "load_lds" in op
            isload = "_load" in op and not self.lds
            ret_atomic = "atomic" in op and re.search(r"\bsc0\b", rest)
            if isload:
                self.w = set(R[0]); self.r = U(R[1:])
            else:
                self.r = U(R)
                if ret_atomic:
                    self.w = set(R[0])
            if self.lds:
                self.r |= {"m0"}
            if "_store" in op and ("x3" in op or "x4" in op):
                self.wide = R[0] if op.startswith("buffer_") else R[1]
        elif op.startswith("ds_"):
            self.cls = "ds"
            if op.startswith(("ds_read", "ds_bpermute", "ds_permute", "ds_swizzle")) or "_rtn" in op:
                self.w = set(R[0]); self.r = U(R[1:])
            else:
                self.r = U(R)
        else:
            raise ValueError("unknown op " + text)


def isv(x): return x[0] == "v" and x != "vcc"
def iss(x): return x[0] == "s" or x == "vcc"


def need(p, c):
    n = 0
    if p.cls == "valu":
        pv = {x for x in p.w if isv(x)}
        ps = {x for x in p.w if iss(x)}
        if c.cls == "valu":
            if c.dpp and pv & c.r: n = max(n, 2)
            if c.perm and pv & c.r: n = max(n, 2)
            if c.rdlane and pv & c.r: n = max(n, 1)
            if ps & c.r: n = max(n, 4 if c.op.startswith(("v_readlane", "v_writelane")) else 2)
            if p.trans and pv & c.r: n = max(n, 1)
            if "exec" in p.w and c.dpp: n = max(n, 5)
            if "exec" in p.w and (c.rdlane or c.perm): n = max(n, 4)
        if c.cls == "mfma":
            if pv & c.r: n = max(n, 2)
            if "exec" in p.w: n = max(n, 4)
        if c.cls == "vmem" and ps & c.r: n = max(n, 5)
        if c.cls in ("vmem", "ds") and p.trans and pv & c.r: n = max(n, 1)
    if p.cls == "mfma":
        tb = {2: (2, 4, 5, 5, 1), 4: (0, 6, 8, 8, 3), 8: (0, 10, 12, 12, 7)}[p.passes]
        if c.cls == "mfma":
            if c.c & p.d:
                n = max(n, tb[0] if (c.c == p.d and c.passes == p.passes) else tb[1])
            if c.ab & p.d: n = max(n, tb[2])
            if c.d & p.d and not (c.c == p.d): n = max(n, tb[3])
        elif c.cls in ("valu", "vmem", "ds"):
            if p.d & (c.r | c.w): n = max(n, tb[3])
            if c.cls == "valu" and p.c & c.w: n = max(n, tb[4])
    if p.cls == "vmem" and p.wide:
        if p.wide & c.w: n = max(n, 2 if c.cls in ("valu", "mfma") else 1)
    if p.cls == "salu" and "m0" in p.w and c.cls == "vmem" and c.lds: n = max(n, 1)
    return n


MAXW = 12


def process(lines, fix=True, verbose=False):
    ins = [I(l) for l in lines]
    total = 0
    i = 0
    while i < len(ins):
        c = ins[i]
        if c.op is None or c.cls in ("nop", "br", "salu", "smem"):
            i += 1
            continue
        labels = {x.label: k for k, x in enumerate(ins) if x.label} if process.dirty else process.labels
        if process.dirty:
            process.labels = labels
            br = {}
            for k, x in enumerate(ins):
                if x.target: br.setdefault(labels[x.target], []).append(k)
            process.br = br
            process.dirty = False
        worst = 0; wp = None
        stack = [(i - 1, 0)]
        seen = set()
        while stack:
            k, dist = stack.pop()
            if k < 0 or dist >= MAXW or (k, dist) in seen: continue
            seen.add((k, dist))
            p = ins[k]
            if p.label:
                for b in process.br.get(k, []):
                    stack.append((b, dist))
                stack.append((k - 1, dist))
                continue
            if p.op is None:
                stack.append((k - 1, dist)); continue
            d = need(p, c) - dist
            if d > worst: worst, wp = d, p
            q = k - 1
            while q >= 0 and ins[q].op is None and not ins[q].label: q -= 1
            if q >= 0 and ins[q].op in ("s_branch", "s_endpgm"):
                pass
            else:
                stack.append((k - 1, dist + p.states))
        if worst > 0:
            total += worst
            if verbose or not fix:
                print(f"hazard: need {worst} more between '{wp.text.strip()}' and '{c.text.strip()}'")
            if fix:
                ins.insert(i, I(f"  s_nop {worst-1}"))
                process.dirty = True
                i += 1
        i += 1
    return [x.text for x in ins], total


process.dirty = True
process.labels = {}
process.br = {}


def run(lines, fix=True, verbose=False):
    process.dirty = True
    return process(lines, fix, verbose)


if __name__ == "__main__":
    L = open(sys.argv[1]).read().split("\n")
    out, tot = run(L, fix=False)
    print("missing states:", tot)
```

```python
import sys, struct, os
sys.path.insert(0, os.path.dirname(os.path.abspath(__file__)))
import hz

NAME = "sequential_preLN__mha_block_cached__glu_gated_geglu__decode"

HEADER = """; Kernarg layout for this problem (96 bytes, ptrs only, base s[0:1]):
"""


def f32(x):
    return "0x%08x" % struct.unpack("<I", struct.pack("<f", x))[0]


LOG2E = 1.4426950408889634
WS_STATS = 0
WS_H = 8192
WS_Y1 = 16384
WS_Y2 = WS_Y1 + 2 * 36 * 128 * 64
WS_END = WS_Y2 + 2 * 36 * 144 * 64
WS_CLR = 5120 * 256
assert WS_END <= WS_CLR
WS_SIZE = WS_CLR
OOB = 0x40000000
L_G = 0
L_U = 36864
L_DN = 73728
L_PARK = 0
L_WOS = 114688
L_QP = L_WOS + 36864
L_OP = L_QP + 2048
L_HN = L_OP + 1024
L_ACT = L_HN + 2560
L_END = L_ACT + 1024
STAMP_OFF = 480 << 20
SPIN = 0x4000


class Gen:
    def __init__(self, **p):
        self.p = dict(RING=10, NP=7, L=6, L0=5, PRE=14, BURST=2, CPI=1, SMT=8, CNT_M=110, STAT_M=232, DPU=1, LD=8,
                      KVPOL="nt", WPOL="nt", MPOL="nt", STAMPS=0, DIAG=0, HMAP=0, SKIP=0,
                      AUXPRIO=0, AUXPRIO0=0, SPRIO=1, LA=5, LA2=3, CLR=40, CLRPRIO=2)
        self.p.update(p)
        self.o = []
        self.vm = 0
        self.nlab = 0
        self.nstamp = 0

    def A(self, s):
        if s.startswith("s_nop") or s.startswith("s_sleep"):
            return
        self.o.append("  " + s)

    def L(self, s):
        self.o.append(s + ":")

    def lab(self, base):
        self.nlab += 1
        return f"L_{base}_{self.nlab}"

    def V(self, s):
        self.A(s)
        if "_store" not in s:
            self.vm += 1
        return self.vm

    def wait_vm(self, seq):
        n = self.vm - seq
        assert 0 <= n <= 63, n
        self.A(f"s_waitcnt vmcnt({n})")

    def nop(self, n):
        while n > 0:
            k = min(n, 16)
            self.A(f"s_nop {k-1}")
            n -= k

    def srd(self, d, lo, hi, nrec):
        A = self.A
        A(f"s_mov_b32 s{d}, {lo}")
        A(f"s_and_b32 s{d+1}, {hi}, 0xffff")
        A(f"s_mov_b32 s{d+2}, {nrec}")
        A(f"s_mov_b32 s{d+3}, 0x20000")

    def stamp(self, idx, tail=False):
        if not self.p["STAMPS"] or (tail and self.p["DIAG"]):
            return
        self.A(f"s_memrealtime s[{80+2*idx}:{81+2*idx}]")
        self.A("s_waitcnt lgkmcnt(0)")

    def store_stamps(self, idxs):
        if not self.p["STAMPS"]:
            return
        A = self.A
        n = self.p["STAMPS"]
        A(f"s_add_u32 s72, s38, {STAMP_OFF}")
        A("s_addc_u32 s73, s39, 0")
        A(f"s_mul_i32 s74, s2, {8*n}")
        A("v_mov_b32 v4, s74")
        A("s_mov_b64 exec, 1")
        for i in idxs:
            A(f"v_mov_b32 v6, s{80+2*i}")
            A(f"v_mov_b32 v7, s{81+2*i}")
            A(f"global_store_dwordx2 v4, v[6:7], s[72:73] offset:{8*i}")
            A("s_nop 1")
        A("s_mov_b64 exec, -1")

    def dpp(self, op, dst, src0, src1, ctrl):
        if src1 is None:
            self.A(f"{op}_dpp {dst}, {src0} {ctrl} row_mask:0xf bank_mask:0xf")
        else:
            self.A(f"{op}_dpp {dst}, {src0}, {src1} {ctrl} row_mask:0xf bank_mask:0xf")

    def row_reduce(self, op, regs, rors):
        for r in rors:
            pad = max(0, 2 - (len(regs) - 1))
            self.nop(pad)
            for v in regs:
                self.dpp(op, v, v, v, f"row_ror:{r}")

    def cross_rows(self, op, v, tmp):
        A = self.A
        A(f"v_mov_b32 {tmp}, {v}")
        self.nop(2)
        A(f"v_permlane32_swap_b32 {v}, {tmp}")
        A(f"{op} {v}, {v}, {tmp}")
        A(f"v_mov_b32 {tmp}, {v}")
        self.nop(2)
        A(f"v_permlane16_swap_b32 {v}, {tmp}")
        A(f"{op} {v}, {v}, {tmp}")

    def round_bf16(self, dst, src):
        self.A(f"v_cvt_pk_bf16_f32 {dst}, {src}, {src}")
        self.A(f"v_and_b32 {dst}, 0xffff0000, {dst}")

    def ln_scalars(self, vsum_sq, vmean, vmb, vrden, t):
        A = self.A
        A(f"v_mul_f32 {t}, {f32(1.0/576)}, {vsum_sq}")
        self.round_bf16(t, t)
        A(f"v_add_f32 {t}, {f32(1e-5)}, {t}")
        self.round_bf16(t, t)
        A(f"v_sqrt_f32 {t}, {t}")
        self.round_bf16(vmb, vmean)
        self.round_bf16(t, t)
        A(f"v_rcp_f32 {vrden}, {t}")
        A("s_nop 0")

    def gen(self):
        p = self.p
        A, L, V = self.A, self.L, self.V
        o = self.o
        o.append(HEADER.rstrip("\n"))
        o.append(f"; @launch grid=(256,1,1) block=(512,1,1) lds={L_END}")
        o.append('.amdgcn_target "amdgcn-amd-amdhsa--gfx950"')
        o.append(".text")
        o.append(f".globl {NAME}_kernel")
        o.append(".p2align 8")
        o.append(f".type {NAME}_kernel,@function")
        L(f"{NAME}_kernel")
        A("s_cmp_ge_u32 s2, 256")
        A("s_cbranch_scc1 L_end")
        A("s_load_dwordx16 s[16:31], s[0:1], 0")
        A("s_load_dwordx8 s[32:39], s[0:1], 64")
        if p["STAMPS"]:
            A("s_memrealtime s[80:81]")
        A("v_and_b32 v1, 63, v0")
        A("v_lshrrev_b32 v2, 6, v0")
        A("s_lshr_b32 s8, s2, 3")
        A("v_readfirstlane_b32 s3, v2")
        A("s_and_b32 s9, s2, 7")
        hm = p["HMAP"]
        if hm == 0:
            A("s_and_b32 s4, s2, 31")
            A("s_lshr_b32 s10, s2, 5")
        elif hm == 9:
            A("s_lshr_b32 s4, s2, 2")
            A("s_and_b32 s4, s4, 31")
            A("s_lshr_b32 s10, s2, 7")
            A("s_lshl_b32 s10, s10, 2")
            A("s_and_b32 s11, s2, 3")
            A("s_add_u32 s10, s10, s11")
        else:
            lg = hm + 1
            A(f"s_lshr_b32 s4, s9, {lg-2}")
            A(f"s_lshl_b32 s4, s4, {lg}")
            A(f"s_and_b32 s10, s8, {(1<<lg)-1}")
            A("s_add_u32 s4, s4, s10")
            A(f"s_and_b32 s10, s9, {(1<<(lg-2))-1}")
            A(f"s_lshl_b32 s10, s10, {5-lg}")
            A(f"s_lshr_b32 s11, s8, {lg}")
            A("s_add_u32 s10, s10, s11")
        A("s_and_b32 s5, s10, 3")
        A("s_lshr_b32 s6, s10, 2")
        A("s_lshl_b32 s7, s6, 5")
        A("s_add_u32 s7, s7, s4")
        A("v_lshrrev_b32 v10, 4, v1")
        A("v_and_b32 v11, 15, v1")
        A("s_cmp_ge_u32 s3, 4")
        A("s_cbranch_scc1 L_aux")
        self.stream()
        self.aux()
        L("L_end")
        A("s_endpgm")
        o.append('.section .rodata,"a"')
        o.append(".p2align 6")
        o.append(f".amdhsa_kernel {NAME}_kernel")
        o.append("  .amdhsa_next_free_vgpr 256")
        o.append("  .amdhsa_next_free_sgpr 102")
        o.append("  .amdhsa_accum_offset 256")
        o.append("  .amdhsa_group_segment_fixed_size 0")
        o.append("  .amdhsa_kernarg_size 96")
        o.append("  .amdhsa_user_sgpr_count 2")
        o.append("  .amdhsa_user_sgpr_kernarg_segment_ptr 1")
        o.append("  .amdhsa_system_sgpr_workgroup_id_x 1")
        o.append(".end_amdhsa_kernel")
        lines = "\n".join(o).split("\n")
        lines, tot = hz.run(lines, fix=True)
        return "\n".join(lines) + "\n"

    def masks(self):
        A = self.A
        A("v_and_b32 v4, 1, v11")
        A("v_lshlrev_b32 v4, 4, v4")
        A("v_mov_b32 v5, 0xffff")
        A("v_lshlrev_b32 v4, v4, v5")
        A("v_lshrrev_b32 v5, 1, v11")
        for r in range(4):
            A(f"v_cmp_eq_u32 vcc, {r}, v5")
            A("s_nop 1")
            A(f"v_cndmask_b32 v{32+r}, 0, v4, vcc")

    def stream(self):
        p = self.p
        A, L, V = self.A, self.L, self.V
        RING = p["RING"]
        self.vm = 0
        A(f"s_setprio {p['SPRIO']}")
        A("v_lshrrev_b32 v4, 2, v1")
        A("v_and_b32 v4, 3, v4")
        A("v_lshlrev_b32 v5, 8, v4")
        A("v_lshlrev_b32 v6, 6, v10")
        A("v_and_b32 v7, 3, v1")
        A("v_lshlrev_b32 v7, 4, v7")
        A("v_add3_u32 v2, v5, v6, v7")
        A("s_lshl_b32 s10, s3, 12")
        A("v_add_u32 v2, s10, v2")
        A("v_lshlrev_b32 v3, 4, v1")
        A("v_add_u32 v3, s10, v3")
        A("s_lshl_b32 s10, s7, 21")
        A("s_lshl_b32 s11, s5, 19")
        A("s_add_u32 s10, s10, s11")
        A("s_waitcnt lgkmcnt(0)")
        A("s_add_u32 s12, s18, s10")
        A("s_addc_u32 s13, s19, 0")
        self.srd(40, "s12", "s13", 1 << 19)
        A("s_add_u32 s12, s20, s10")
        A("s_addc_u32 s13, s21, 0")
        self.srd(44, "s12", "s13", 1 << 19)

        NP, LS = p["NP"], p["L"]
        A(f"s_mul_i32 s13, s3, {NP*4096}")
        st = dict(m=0, landed=0, free=list(range(RING)), slot={}, seq={}, dma=0)
        self.st = st
        extra = {}

        def pace(lim):
            if self.vm - st["landed"] > lim - 1:
                A(f"s_waitcnt vmcnt({lim-1})")
                st["landed"] = self.vm - (lim - 1)

        def wait_seq(q):
            if st["landed"] < q:
                self.wait_vm(q)
                st["landed"] = q

        def tick(lim=None):
            m = st["m"]
            if m >= 256:
                return False
            n, t = divmod(m, 4)
            if t == 0 and n >= NP:
                if not st["free"]:
                    return False
                st["slot"][n] = st["free"].pop(0)
            pace(lim or LS)
            srd = "s[40:43]" if n < 32 else "s[44:47]"
            voff = "v2" if n < 32 else "v3"
            j = n % 32
            so = "s14" if j else "0"
            if t == 0 and j:
                A(f"s_mov_b32 s14, {j*16384}")
            if n < NP:
                if t == 0:
                    A(f"s_add_u32 m0, s13, {L_PARK + n*4096}")
                st["seq"][m] = V(f"buffer_load_dwordx4 {voff}, {srd}, {so} offen offset:{1024*t} {p['KVPOL']} lds")
            else:
                r = 96 + 16 * st["slot"][n] + 4 * t
                st["seq"][m] = V(f"buffer_load_dwordx4 v[{r}:{r+3}], {voff}, {srd}, {so} offen offset:{1024*t} {p['KVPOL']}")
            st["m"] = m + 1
            if m == p["CNT_M"]:
                A("v_lshlrev_b32 v60, 2, v1")
                extra["cnt"] = V("global_load_dword v61, v60, s[36:37] sc1")
            if m == p["STAT_M"]:
                self.stat_load(extra)
            return True

        for _ in range(p["L0"]):
            tick(p["L0"])
        self.srd(56, "s38", "s39", WS_SIZE)
        self.masks()
        A("v_mov_b32 v12, 0xff800000")
        A("s_mul_i32 s15, s9, 18")
        A("s_add_u32 s15, s15, s8")
        A("v_lshlrev_b32 v8, 4, v1")
        A("v_add_u32 v8, s13, v8")
        A("v_and_b32 v9, 3, v1")
        A("v_lshl_add_u32 v9, v10, 2, v9")
        A("v_lshlrev_b32 v9, 5, v9")
        A(f"v_add_u32 v9, {L_QP}, v9")
        while st["m"] < 4 * p["PRE"]:
            assert tick(p["L0"])
        self.stamp(1)
        A("s_barrier")
        self.stamp(2)
        for a in range(4):
            A(f"ds_read_b128 v[{64+8*a}:{67+8*a}], v9 offset:{a*512}")
            A(f"ds_read_b128 v[{68+8*a}:{71+8*a}], v9 offset:{a*512+16}")
        for _ in range(p["BURST"]):
            tick(64)
        A("s_waitcnt lgkmcnt(0)")
        for i in range(8):
            A(f"v_add_f32 v{64+i}, v{64+i}, v{72+i}")
            A(f"v_add_f32 v{80+i}, v{80+i}, v{88+i}")
        for i in range(8):
            A(f"v_add_f32 v{64+i}, v{64+i}, v{80+i}")
        for i in range(4):
            A(f"v_cvt_pk_bf16_f32 v{56+i}, v{64+2*i}, v{65+2*i}")
        A("v_lshrrev_b32 v4, 2, v1")
        A("v_and_b32 v4, 3, v4")
        for t in range(4):
            A(f"v_cmp_eq_u32 vcc, {t}, v4")
            for i in range(4):
                A(f"v_cndmask_b32 v{16+4*t+i}, 0, v{56+i}, vcc")

        def score(j, d):
            self.dpp("v_mov_b32", "v4", f"v{d}", None, "quad_perm:[0,0,0,0]")
            self.dpp("v_mov_b32", "v5", f"v{d+2}", None, "quad_perm:[2,2,2,2]")
            self.dpp("v_add_f32", "v4", f"v{d+1}", "v4", "quad_perm:[1,1,1,1]")
            self.dpp("v_add_f32", "v5", f"v{d+3}", "v5", "quad_perm:[3,3,3,3]")
            A("v_add_f32 v4, v4, v5")
            self.round_bf16("v4", "v4")
            A(f"v_mul_f32 v4, {f32(128 ** -0.5)}, v4")
            self.round_bf16(f"v{64+j}", "v4")
            A(f"v_max_f32 v12, v12, v{64+j}")

        ring_todo = list(range(NP, 32))
        parked = list(range(NP))
        unparked = []
        kdone = 0
        pend = None

        def kgroup(n):
            nonlocal kdone, pend
            d = 36 + 4 * (kdone & 1)
            for t in range(4):
                r = 96 + 16 * st["slot"][n] + 4 * t
                c = "0" if t == 0 else f"v[{d}:{d+3}]"
                A(f"v_mfma_f32_16x16x32_bf16 v[{d}:{d+3}], v[{r}:{r+3}], v[{16+4*t}:{19+4*t}], {c}")
            if pend:
                score(*pend)
            pend = (n, d)
            kdone += 1
            st["free"].append(st["slot"][n])

        def kavail(n):
            q = st["seq"].get(4 * n + 3)
            return q is not None and q <= st["landed"]

        while kdone < 32:
            ok = tick()
            did = 0
            while did < p["CPI"]:
                if ring_todo and kavail(ring_todo[0]):
                    kgroup(ring_todo.pop(0))
                elif unparked:
                    A("s_waitcnt lgkmcnt(0)")
                    kgroup(unparked.pop(0))
                else:
                    break
                did += 1
            if parked and not unparked and len(st["free"]) >= 2 and kavail(parked[0]):
                n = parked.pop(0)
                st["slot"][n] = st["free"].pop(0)
                for t in range(4):
                    r = 96 + 16 * st["slot"][n] + 4 * t
                    A(f"ds_read_b128 v[{r}:{r+3}], v8 offset:{L_PARK + n*4096 + 1024*t}")
                unparked.append(n)
                did += 1
            if not ok and not did:
                wait_seq(st["seq"][4 * ring_todo[0] + 3])
        score(*pend)
        self.stamp(3)
        self.row_reduce("v_max_f32", ["v12"], [4, 8])
        self.cross_rows("v_max_f32", "v12", "v4")
        A(f"v_mul_f32 v13, {f32(LOG2E)}, v12")
        A(f"s_mov_b32 s10, {f32(LOG2E)}")
        A("v_mov_b32 v14, 0")
        A("v_mov_b32 v15, 0")
        for j in range(0, 32, 2):
            if j % p["SMT"] == 0:
                tick()
            A(f"v_fma_f32 v4, v{64+j}, s10, -v13")
            A(f"v_fma_f32 v5, v{65+j}, s10, -v13")
            A("v_exp_f32 v4, v4")
            A("v_exp_f32 v5, v5")
            A("v_add_f32 v14, v14, v4")
            A("v_add_f32 v15, v15, v5")
            A(f"v_cvt_pk_bf16_f32 v{64+j}, v4, v4")
            A(f"v_cvt_pk_bf16_f32 v{65+j}, v5, v5")
        tick()
        A("v_add_f32 v14, v14, v15")
        self.row_reduce("v_add_f32", ["v14"], [4, 8])
        self.cross_rows("v_add_f32", "v14", "v4")
        wait_seq(extra["cnt"])
        lok, lsp = self.lab("cntok"), self.lab("cntspin")
        A("s_mov_b32 s11, 0")
        L(lsp)
        if p["CLR"] == 256:
            A("v_cmp_eq_u32 vcc, 0x01010101, v61")
        else:
            A("v_cmp_ne_u32 vcc, 0, v61")
        A("s_bcnt1_i32_b64 s10, vcc")
        A(f"s_cmp_ge_u32 s10, {0 if p['SKIP'] & 4 else min(p['CLR'], 64)}")
        A(f"s_cbranch_scc1 {lok}")
        A("s_add_u32 s11, s11, 1")
        A(f"s_cmp_ge_u32 s11, {SPIN}")
        A(f"s_cbranch_scc1 {lok}")
        A("global_load_dword v61, v60, s[36:37] sc1")
        A("s_waitcnt vmcnt(0)")
        A(f"s_branch {lsp}")
        L(lok)
        if p["DIAG"] == 1:
            self.stamp(5)
        A("s_lshl_b32 s10, s7, 7")
        A("s_lshl_b32 s11, s5, 5")
        A("s_add_u32 s10, s10, s11")
        A("s_lshl_b32 s11, s3, 3")
        A("s_add_u32 s10, s10, s11")
        A("v_cmp_eq_u32 vcc, 0, v1")
        A(f"v_mov_b32 v4, {OOB}")
        A("v_mov_b32 v6, v13")
        A("v_cndmask_b32 v4, v4, v1, vcc")
        A("v_mov_b32 v7, v14")
        V(f"buffer_store_dwordx2 v[6:7], v4, s[56:59], s10 offen offset:{WS_STATS} sc1")
        A("v_lshlrev_b32 v8, 4, v11")
        A("v_lshl_add_u32 v8, v10, 3, v8")
        A("s_lshl_b32 s10, s3, 8")
        A(f"s_add_u32 s10, s10, {L_OP}")
        A("v_add_u32 v8, s10, v8")
        self.mlp_dma_setup()
        st["vu"] = 128
        st["stat_done"] = False

        def vunit(wait=False):
            m = st["vu"]
            n, u = divmod(m, 4)
            j = n - 32
            a = 48 + 4 * (u & 1)
            for r in range(4):
                self.dpp("v_and_b32", f"v{a+r}", f"v{64+j}", f"v{32+r}", f"row_newbcast:{4*u}")
            if wait:
                wait()
            r = 96 + 16 * st["slot"][n] + 4 * u
            c = "0" if m == 128 else "v[44:47]"
            A(f"v_mfma_f32_16x16x32_bf16 v[44:47], v[{a}:{a+3}], v[{r}:{r+3}], {c}")
            st["vu"] = m + 1
            if u == 3:
                st["free"].append(st["slot"][n])
                if p["DIAG"] == 1 and j == 12:
                    self.stamp(6)
                if p["DIAG"] == 1 and j == 24:
                    self.stamp(7)

        def vavail():
            q = st["seq"].get(st["vu"])
            return q is not None and q <= st["landed"]

        def statchk():
            if not st["stat_done"] and "stat" in extra and extra["stat"] <= st["landed"]:
                self.stat_use(extra)
                st["stat_done"] = True

        while st["m"] < 256:
            ok = tick()
            did = 0
            while did < 4 * p["CPI"] and vavail():
                vunit()
                did += 1
            statchk()
            if not ok and not did:
                wait_seq(st["seq"][st["vu"]])
        assert st["stat_done"]

        def finish():
            self.stamp(4)
            for r in range(4):
                A(f"v_mul_f32 v{44+r}, v{44+r}, v9")
            A("v_cvt_pk_bf16_f32 v6, v44, v45")
            A("v_cvt_pk_bf16_f32 v7, v46, v47")
            A("s_mov_b64 exec, 0xffffffff")
            A("ds_write_b64 v8, v[6:7]")
            A("s_mov_b64 exec, -1")
            A("s_waitcnt lgkmcnt(0)")
            A("s_barrier")

        import copy
        A("s_cmp_lt_u32 s8, 18")
        A("s_cbranch_scc1 L_mlp_drain")
        save = (copy.deepcopy(st), self.vm)
        while st["vu"] < 256:
            vunit(lambda: wait_seq(st["seq"][st["vu"]]))
        finish()
        A("s_cmp_lg_u32 s3, 0")
        A("s_cbranch_scc1 L_end")
        A("s_cmp_lt_u32 s8, 27")
        A("s_cbranch_scc1 L_red")
        self.store_stamps([0, 1, 2, 3, 4] + ([5, 6, 7] if p['DIAG'] == 1 else []))
        A("s_endpgm")
        L("L_mlp_drain")
        st.clear()
        st.update(save[0])
        self.vm = save[1]
        ndma = 0
        while st["vu"] < 256:
            def w():
                nonlocal ndma
                wait_seq(st["seq"][st["vu"]])
                for _ in range(p["DPU"]):
                    self.mlp_dma(ndma)
                    ndma += 1
            vunit(w)
        finish()
        while ndma < 27:
            pace(p["LD"])
            self.mlp_dma(ndma)
            ndma += 1
        self.mlp()
        self.red()

    def stat_load(self, extra):
        A = self.A
        A("v_lshlrev_b32 v58, 3, v11")
        A("s_lshl_b32 s75, s7, 7")
        extra["stat"] = self.V(f"buffer_load_dwordx2 v[56:57], v58, s[56:59], s75 offen offset:{WS_STATS} sc1")

    def stat_use(self, extra):
        A, L = self.A, self.L
        lok, lsp = self.lab("stok"), self.lab("stspin")
        A("s_mov_b32 s11, 0")
        L(lsp)
        A("v_max_u32 v4, v56, v57")
        A("v_cmp_eq_u32 vcc, -1, v4")
        A(f"s_cbranch_vccz {lok}")
        A("s_add_u32 s11, s11, 1")
        A(f"s_cmp_ge_u32 s11, {SPIN}")
        A(f"s_cbranch_scc1 {lok}")
        A("s_sleep 2")
        A(f"buffer_load_dwordx2 v[56:57], v58, s[56:59], s75 offen offset:{WS_STATS} sc1")
        A("s_waitcnt vmcnt(0)")
        A(f"s_branch {lsp}")
        L(lok)
        A("v_mov_b32 v4, v56")
        self.row_reduce("v_max_f32", ["v4"], [1, 2, 4, 8])
        A("v_sub_f32 v5, v56, v4")
        A("v_sub_f32 v6, v13, v4")
        A("v_exp_f32 v5, v5")
        A("v_exp_f32 v6, v6")
        A("s_nop 0")
        A("v_mul_f32 v5, v5, v57")
        self.row_reduce("v_add_f32", ["v5"], [1, 2, 4, 8])
        A("v_rcp_f32 v5, v5")
        A("s_nop 0")
        A("v_mul_f32 v9, v5, v6")

    def mlp_dma_setup(self):
        A = self.A
        A("v_lshrrev_b32 v4, 2, v1")
        A("v_mul_u32_u24 v4, 9216, v4")
        A("v_lshrrev_b32 v5, 5, v1")
        A("v_and_b32 v6, 3, v1")
        A("v_xor_b32 v5, v5, v6")
        A("v_lshl_add_u32 v62, v5, 4, v4")
        A("v_xor_b32 v5, 2, v5")
        A("v_lshl_add_u32 v63, v5, 4, v4")
        A("v_lshlrev_b32 v59, 4, v1")
        self.srd(48, "s28", "s29", 576 * 9216)
        self.srd(52, "s30", "s31", 576 * 9216)
        self.srd(60, "s32", "s33", 4608 * 1152)
        A(f"s_mul_i32 s76, s3, {9*16*9216}")
        A("s_lshl_b32 s77, s15, 6")
        A("s_add_u32 s76, s76, s77")
        A("s_mul_i32 s77, s15, 36864")
        A("s_mul_i32 s78, s3, 9216")
        A("s_add_u32 s77, s77, s78")

    def mlp_dma(self, k):
        A, V = self.A, self.V
        pol = self.p["MPOL"]
        if k < 18:
            i = k // 2
            if k % 2 == 0:
                A(f"s_add_u32 m0, s78, {L_G + 1024*i}")
                V(f"buffer_load_dwordx4 v62, s[48:51], s76 offen {pol} lds")
            else:
                A(f"s_add_u32 m0, s78, {L_U + 1024*i}")
                V(f"buffer_load_dwordx4 v63, s[52:55], s76 offen {pol} lds")
                if i < 8:
                    A(f"s_add_u32 s76, s76, {16*9216}")
        else:
            i = k - 18
            A(f"s_add_u32 m0, s78, {L_DN + 1024*i}")
            V(f"buffer_load_dwordx4 v59, s[60:63], s77 offen {pol} lds")
            if i < 8:
                A("s_add_u32 s77, s77, 1024")

    def mlp(self):
        p = self.p
        A, L, V = self.A, self.L, self.V
        A("s_waitcnt vmcnt(0)")
        if p["DIAG"] == 4:
            self.stamp(9)
        A("s_barrier")
        A("v_lshrrev_b32 v4, 2, v1")
        A("v_and_b32 v4, 3, v4")
        A("v_lshl_add_u32 v4, v10, 3, v4")
        A("v_and_b32 v5, 1, v1")
        A("v_and_b32 v6, 1, v10")
        A("v_lshlrev_b32 v7, 1, v5")
        A("v_xor_b32 v6, v6, v7")
        A("v_xor_b32 v6, s3, v6")
        A("v_lshlrev_b32 v6, 4, v6")
        A("v_lshl_add_u32 v6, v4, 6, v6")
        A(f"v_mul_u32_u24 v5, {L_U - L_G}, v5")
        A("v_add_u32 v6, v6, v5")
        A("v_and_b32 v5, 2, v1")
        A("v_lshl_add_u32 v6, v5, 2, v6")
        for s in range(18):
            r = 96 + 4 * s
            A(f"ds_read_b64_tr_b16 v[{r}:{r+1}], v6 offset:{L_G + 2048*s}")
            A(f"ds_read_b64_tr_b16 v[{r+2}:{r+3}], v6 offset:{L_G + 2048*s + 256}")
        A("v_mul_u32_u24 v7, 1152, v4")
        A("v_and_b32 v5, 3, v1")
        A("v_lshl_add_u32 v7, v5, 3, v7")
        A("s_mul_i32 s10, s3, 288")
        A(f"s_add_u32 s10, s10, {L_DN}")
        A("v_add_u32 v7, s10, v7")
        for t in range(9):
            r = 168 + 4 * t
            A(f"ds_read_b64_tr_b16 v[{r}:{r+1}], v7 offset:{32*t}")
            A(f"ds_read_b64_tr_b16 v[{r+2}:{r+3}], v7 offset:{32*t + 4608}")
        A("v_and_b32 v4, 1, v1")
        A("v_mul_u32_u24 v4, 1152, v4")
        A("v_lshl_add_u32 v4, v10, 4, v4")
        A(f"v_add_u32 v16, {L_HN}, v4")
        A("v_lshlrev_b32 v4, 6, v11")
        A("v_lshl_add_u32 v5, v10, 4, v4")
        A(f"v_add_u32 v17, {L_ACT}, v5")
        A("v_and_b32 v5, 1, v10")
        A("v_and_b32 v6, 2, v10")
        A("v_lshl_add_u32 v5, v6, 1, v5")
        A("v_lshl_add_u32 v5, v5, 1, v4")
        A("s_lshl_b32 s10, s3, 4")
        A(f"s_add_u32 s10, s10, {L_ACT}")
        A("v_add_u32 v18, s10, v5")
        A(f"v_mul_u32_u24 v4, {36*144*64}, v11")
        A("v_lshl_add_u32 v4, v10, 4, v4")
        A(f"v_mov_b32 v5, {OOB}")
        A("v_cmp_gt_u32 vcc, 2, v11")
        A("s_mul_i32 s12, s3, 9")
        A("s_mul_i32 s12, s12, 144")
        A("v_cndmask_b32 v19, v5, v4, vcc")
        A("s_add_u32 s12, s12, s15")
        A("s_lshl_b32 s12, s12, 6")
        A(f"s_add_u32 s12, s12, {WS_Y2}")
        A("s_waitcnt lgkmcnt(0)")
        self.stamp(5, True)
        A("s_cmp_ge_u32 s3, 2")
        A("s_cbranch_scc1 L_mlp_hn")
        A("v_lshlrev_b32 v20, 4, v1")
        A("v_lshlrev_b32 v21, 2, v1")
        A("s_mul_i32 s10, s3, 2304")
        A(f"s_add_u32 s10, s10, {WS_H}")
        A("s_mov_b32 s11, 0")
        L("L_hpoll")
        A("buffer_load_dwordx4 v[24:27], v20, s[56:59], s10 offen sc1")
        A("buffer_load_dwordx4 v[28:31], v20, s[56:59], s10 offen offset:1024 sc1")
        A("buffer_load_dword v32, v21, s[56:59], s10 offen offset:2048 sc1")
        A("s_add_u32 s11, s11, 1")
        A(f"s_cmp_ge_u32 s11, {SPIN}")
        A("s_waitcnt vmcnt(0)")
        A("s_cbranch_scc1 L_hok")
        A("v_max3_u32 v4, v24, v25, v26")
        A("v_max3_u32 v5, v27, v28, v29")
        A("v_max3_u32 v6, v30, v31, v32")
        A("v_max3_u32 v4, v4, v5, v6")
        A("v_cmp_eq_u32 vcc, -1, v4")
        A("s_cbranch_vccnz L_hpoll")
        L("L_hok")
        self.stamp(6, True)
        A("v_add_f32 v4, v24, v25")
        A("v_add_f32 v5, v26, v27")
        A("v_add_f32 v6, v28, v29")
        A("v_add_f32 v7, v30, v31")
        A("v_add_f32 v4, v4, v5")
        A("v_add_f32 v6, v6, v7")
        A("v_add_f32 v4, v4, v32")
        A("v_add_f32 v4, v4, v6")
        self.row_reduce("v_add_f32", ["v4"], [1, 2, 4, 8])
        self.cross_rows("v_add_f32", "v4", "v5")
        A(f"v_mul_f32 v4, {f32(1.0/576)}, v4")
        for i in range(9):
            A(f"v_sub_f32 v{36+i}, v{24+i}, v4")
        A("v_mul_f32 v5, v36, v36")
        A("v_mul_f32 v6, v37, v37")
        for i in range(2, 9):
            A(f"v_fmac_f32 v{5 + (i & 1)}, v{36+i}, v{36+i}")
        A("v_add_f32 v5, v5, v6")
        self.row_reduce("v_add_f32", ["v5"], [1, 2, 4, 8])
        self.cross_rows("v_add_f32", "v5", "v6")
        self.ln_scalars("v5", "v4", "v6", "v7", "v8")
        for i in range(9):
            A(f"v_sub_f32 v{36+i}, v{24+i}, v6")
        for i in range(0, 8, 2):
            A(f"v_cvt_pk_bf16_f32 v{24+i}, v{36+i}, v{37+i}")
        A("v_cvt_pk_bf16_f32 v32, v44, v44")
        for i in range(0, 8, 2):
            A(f"v_and_b32 v{25+i}, 0xffff0000, v{24+i}")
            A(f"v_lshlrev_b32 v{24+i}, 16, v{24+i}")
        A("v_lshlrev_b32 v32, 16, v32")
        for i in range(9):
            A(f"v_mul_f32 v{24+i}, v{24+i}, v7")
        for i in range(4):
            A(f"v_cvt_pk_bf16_f32 v{36+i}, v{24+2*i}, v{25+2*i}")
        A("v_cvt_pk_bf16_f32 v40, v32, v32")
        A("s_mul_i32 s10, s3, 1152")
        A(f"s_add_u32 s10, s10, {L_HN}")
        A("v_lshl_add_u32 v4, v1, 3, s10")
        A("v_lshl_add_u32 v5, v1, 1, s10")
        A("ds_write_b64 v4, v[36:37]")
        A("ds_write_b64 v4, v[38:39] offset:512")
        A("ds_write_b16 v5, v40 offset:1024")
        A("s_waitcnt lgkmcnt(0)")
        L("L_mlp_hn")
        A("s_barrier")
        for s in range(13):
            A(f"ds_read_b128 v[{204+4*s}:{207+4*s}], v16 offset:{64*s}")
        def breg(s):
            return 204 + 4 * s if s < 13 else 24 + 4 * (s - 13)
        pend = 13
        for s in range(18):
            if s == 2:
                for s2 in range(13, 15):
                    A(f"ds_read_b128 v[{breg(s2)}:{breg(s2)+3}], v16 offset:{64*s2}")
                    pend += 1
            if s == 5:
                for s2 in range(15, 18):
                    A(f"ds_read_b128 v[{breg(s2)}:{breg(s2)+3}], v16 offset:{64*s2}")
                    pend += 1
            A(f"s_waitcnt lgkmcnt({pend - s - 1})")
            c = "0" if s == 0 else "v[44:47]"
            A(f"v_mfma_f32_16x16x32_bf16 v[44:47], v[{96+4*s}:{99+4*s}], v[{breg(s)}:{breg(s)+3}], {c}")
        self.nop(8)
        A("v_permlane16_swap_b32 v44, v45")
        A("v_permlane16_swap_b32 v46, v47")
        A("v_cvt_pk_bf16_f32 v4, v44, v46")
        A("v_cvt_pk_bf16_f32 v5, v45, v47")
        A("v_lshlrev_b32 v44, 16, v4")
        A("v_and_b32 v46, 0xffff0000, v4")
        A("v_lshlrev_b32 v45, 16, v5")
        A("v_and_b32 v47, 0xffff0000, v5")
        c1 = -2.0 * 0.7978845608028654 * LOG2E
        c2 = c1 * 0.044715
        A(f"s_mov_b32 s10, {f32(c2)}")
        A(f"v_mov_b32 v8, {f32(c1)}")
        A("v_mul_f32 v4, v44, v44")
        A("v_mul_f32 v5, v46, v46")
        A("v_fma_f32 v4, v4, s10, v8")
        A("v_fma_f32 v5, v5, s10, v8")
        A("v_mul_f32 v4, v4, v44")
        A("v_mul_f32 v5, v5, v46")
        A("v_exp_f32 v4, v4")
        A("v_exp_f32 v5, v5")
        A("s_nop 0")
        A("v_add_f32 v4, 1.0, v4")
        A("v_add_f32 v5, 1.0, v5")
        A("v_rcp_f32 v4, v4")
        A("v_rcp_f32 v5, v5")
        A("s_nop 0")
        A("v_mul_f32 v4, v4, v44")
        A("v_mul_f32 v5, v5, v46")
        A("v_cvt_pk_bf16_f32 v4, v4, v5")
        A("v_and_b32 v5, 0xffff0000, v4")
        A("v_lshlrev_b32 v4, 16, v4")
        A("v_mul_f32 v4, v4, v45")
        A("v_mul_f32 v5, v5, v47")
        A("v_cvt_pk_bf16_f32 v4, v4, v5")
        A("ds_write_b16 v18, v4")
        A("ds_write_b16_d16_hi v18, v4 offset:4")
        A("s_waitcnt lgkmcnt(0)")
        A("s_barrier")
        A("ds_read_b128 v[24:27], v17")
        A("s_waitcnt lgkmcnt(0)")
        for t in range(9):
            A(f"v_mfma_f32_16x16x32_bf16 v[{204+4*t}:{207+4*t}], v[{168+4*t}:{171+4*t}], v[24:27], 0")
        for t in range(9):
            A(f"buffer_store_dwordx4 v[{204+4*t}:{207+4*t}], v19, s[56:59], s12 offen sc1")
            if t < 8:
                A(f"s_add_u32 s12, s12, {144*64}")
        self.stamp(7, True)
        if p["STAMPS"]:
            A("s_cmp_lg_u32 s3, 0")
            A("s_cbranch_scc1 L_end")
            self.store_stamps([0, 1, 2, 3, 4] + ([5, 6, 7] if p['DIAG'] < 2 else []))
        A("s_endpgm")

    def poll_sum(self, name, nld, sbase):
        A, L = self.A, self.L
        A(f"s_add_u32 s13, {sbase}, 4096")
        A(f"s_add_u32 s14, {sbase}, 8192")
        A("s_mov_b32 s11, 0")
        L(f"L_{name}_poll")
        for i in range(nld):
            so = [sbase, "s13", "s14"][i // 4]
            A(f"buffer_load_dwordx4 v[{96+4*i}:{99+4*i}], v20, s[56:59], {so} offen offset:{1024*(i%4)} sc1")
        A("s_add_u32 s11, s11, 1")
        A(f"s_cmp_ge_u32 s11, {SPIN}")
        A("s_waitcnt vmcnt(0)")
        A(f"s_cbranch_scc1 L_{name}_ok")
        regs = [f"v{96+i}" for i in range(4 * nld)]
        A(f"v_max3_u32 v4, {regs[0]}, {regs[1]}, {regs[2]}")
        A(f"v_max_u32 v5, {regs[3]}, {regs[3]}")
        k = 0
        for i in range(4, 4 * nld, 2):
            t = "v4" if k % 2 == 0 else "v5"
            A(f"v_max3_u32 {t}, {t}, {regs[i]}, {regs[i+1]}")
            k += 1
        A("v_max_u32 v4, v4, v5")
        A("v_cmp_eq_u32 vcc, -1, v4")
        A(f"s_cbranch_vccnz L_{name}_poll")
        L(f"L_{name}_ok")
        n = nld
        cur = list(range(nld))
        while len(cur) > 1:
            nxt = []
            for i in range(0, len(cur) - 1, 2):
                a, b = cur[i], cur[i + 1]
                for r in range(4):
                    A(f"v_add_f32 v{96+4*a+r}, v{96+4*a+r}, v{96+4*b+r}")
                nxt.append(a)
            if len(cur) % 2:
                nxt.append(cur[-1])
            cur = nxt
        self.nop(2)
        A("v_permlane32_swap_b32 v96, v97")
        A("v_permlane32_swap_b32 v98, v99")
        A("v_add_f32 v96, v96, v97")
        A("v_add_f32 v98, v98, v99")
        self.nop(2)
        A("v_permlane16_swap_b32 v96, v98")
        A("v_add_f32 v4, v96, v98")
        self.row_reduce("v_add_f32", ["v4"], [4, 8])

    def red(self):
        p = self.p
        A, L, V = self.A, self.L, self.V
        L("L_red")
        A("s_mul_i32 s15, s9, 9")
        A("s_add_u32 s15, s15, s8")
        A("s_sub_u32 s15, s15, 18")
        self.srd(64, "s16", "s17", 2304)
        self.srd(68, "s34", "s35", 2304)
        A("v_and_b32 v4, 3, v1")
        A("v_lshlrev_b32 v4, 2, v4")
        A("v_and_b32 v5, 1, v10")
        A("v_lshl_add_u32 v4, v5, 1, v4")
        A("v_lshrrev_b32 v5, 1, v10")
        A("v_add_u32 v4, v4, v5")
        A("s_lshl_b32 s10, s15, 4")
        A("v_add_u32 v4, s10, v4")
        A(f"v_mov_b32 v5, {OOB}")
        A("v_cmp_gt_u32 vcc, 4, v11")
        A("v_lshlrev_b32 v6, 1, v4")
        A("v_lshlrev_b32 v7, 2, v4")
        A("v_cndmask_b32 v22, v5, v6, vcc")
        A("v_cndmask_b32 v23, v5, v7, vcc")
        A("buffer_load_ushort v21, v22, s[64:67], 0 offen")
        A("v_lshlrev_b32 v20, 4, v1")
        A("s_lshl_b32 s12, s15, 13")
        A(f"s_add_u32 s12, s12, {WS_Y1}")
        self.poll_sum("r1", 8, "s12")
        self.stamp(5, True)
        self.round_bf16("v4", "v4")
        A("v_lshlrev_b32 v21, 16, v21")
        A("v_add_f32 v4, v4, v21")
        self.round_bf16("v21", "v4")
        A(f"s_mov_b32 s10, {WS_H}")
        A("buffer_store_dword v21, v23, s[56:59], s10 offen sc1")
        self.stamp(6, True)
        A("s_mul_i32 s12, s15, 9216")
        A(f"s_add_u32 s12, s12, {WS_Y2}")
        self.poll_sum("r3", 9, "s12")
        self.round_bf16("v4", "v4")
        A("v_add_f32 v4, v4, v21")
        A("v_cvt_pk_bf16_f32 v4, v4, v4")
        A("buffer_store_short v4, v22, s[68:71], 0 offen")
        self.stamp(7, True)
        self.store_stamps([0, 1, 2, 3, 4] + ([5, 6, 7] if p['DIAG'] < 2 else []))
        A("s_endpgm")

    def clear_stores(self):
        A = self.A
        for i in range(4):
            A(f"v_mov_b32 v{36+i}, -1")
        A("s_mul_i32 s10, s2, 5120")
        A("s_add_u32 s11, s10, 4096")
        for i in range(4):
            A(f"buffer_store_dwordx4 v[36:39], v20, s[56:59], s10 offen offset:{1024*i} sc1")
        A("buffer_store_dwordx4 v[36:39], v20, s[56:59], s11 offen sc1")

    def aux(self):
        p = self.p
        A, L, V = self.A, self.L, self.V
        self.vm = 0
        L("L_aux")
        A("s_sub_u32 s3, s3, 4")
        A(f"s_setprio {p['AUXPRIO0']}")
        A("v_lshlrev_b32 v2, 13, v10")
        A("v_lshl_add_u32 v2, v11, 4, v2")
        A("v_lshl_add_u32 v3, v11, 2, v10")
        A("s_mul_i32 s10, s3, 144")
        A("v_add_u32 v3, s10, v3")
        A("v_lshlrev_b32 v3, 1, v3")
        A("v_lshlrev_b32 v20, 4, v1")
        A("s_mul_i32 s11, s6, 1152")
        A(f"s_mul_i32 s14, s3, {144*8192}")
        A("s_lshl_b32 s12, s4, 8")
        A("s_add_u32 s14, s14, s12")
        A("s_waitcnt lgkmcnt(0)")
        A("s_add_u32 s12, s16, s11")
        A("s_addc_u32 s13, s17, 0")
        self.srd(64, "s12", "s13", 1152)
        self.srd(40, "s22", "s23", 0 if p["SKIP"] & 2 else 576 * 8192)
        self.srd(56, "s38", "s39", WS_SIZE)
        xa = V("buffer_load_dwordx4 v[24:27], v20, s[64:67], 0 offen")
        xb = V("buffer_load_dwordx4 v[28:31], v20, s[64:67], 0 offen offset:1024")
        for k in range(3):
            xg = V(f"buffer_load_ushort v{16+k}, v3, s[64:67], 0 offen offset:{128*k}")
        wl = []

        land = [0]

        def wq_tick(paced=True):
            u = len(wl)
            if u >= 36:
                return
            lim = p["LA"]
            if paced and self.vm - land[0] > lim - 1:
                A(f"s_waitcnt vmcnt({lim-1})")
                land[0] = self.vm - (lim - 1)
            wl.append(V(f"buffer_load_dwordx4 v[{96+4*u}:{99+4*u}], v2, s[40:43], s14 offen {p['WPOL']}"))
            if u < 35:
                A(f"s_add_u32 s14, s14, {4*8192}")
        for _ in range(p["LA"]):
            wq_tick(False)
        self.srd(44, "s24", "s25", 0 if p["SKIP"] & 1 else 4096 * 1152)
        self.masks()
        if p["DIAG"] == 3:
            self.stamp(9)
        self.wait_vm(xg)
        land[0] = xg
        if p["DIAG"] == 3:
            self.stamp(5)
        for i in range(8):
            A(f"v_lshlrev_b32 v{40+2*i}, 16, v{24+i}")
            A(f"v_and_b32 v{41+2*i}, 0xffff0000, v{24+i}")
        A("v_add_f32 v4, v40, v41")
        A("v_add_f32 v5, v42, v43")
        for i in range(4, 16):
            A(f"v_add_f32 v{4+(i&1)}, v{4+(i&1)}, v{40+i}")
        A("v_add_f32 v4, v4, v5")
        wq_tick()
        self.row_reduce("v_add_f32", ["v4"], [1, 2, 4, 8])
        self.cross_rows("v_add_f32", "v4", "v5")
        A(f"v_mul_f32 v4, {f32(1.0/576)}, v4")
        wq_tick()
        for i in range(16):
            A(f"v_sub_f32 v{40+i}, v{40+i}, v4")
        A("v_mul_f32 v5, v40, v40")
        for i in range(1, 8):
            A(f"v_fmac_f32 v5, v{40+i}, v{40+i}")
        A("v_mul_f32 v6, v48, v48")
        for i in range(9, 16):
            A(f"v_fmac_f32 v6, v{40+i}, v{40+i}")
        A("v_cmp_gt_u32 vcc, 8, v1")
        A("s_nop 1")
        A("v_cndmask_b32 v6, 0, v6, vcc")
        A("v_add_f32 v5, v5, v6")
        wq_tick()
        self.row_reduce("v_add_f32", ["v5"], [1, 2, 4, 8])
        self.cross_rows("v_add_f32", "v5", "v6")
        wq_tick()
        self.ln_scalars("v5", "v4", "v6", "v7", "v8")
        for k in range(3):
            A(f"v_lshlrev_b32 v{16+k}, 16, v{16+k}")
            A(f"v_sub_f32 v{16+k}, v{16+k}, v6")
            self.round_bf16(f"v{16+k}", f"v{16+k}")
            A(f"v_mul_f32 v{16+k}, v{16+k}, v7")
            A(f"v_cvt_pk_bf16_f32 v{16+k}, v{16+k}, v{16+k}")
        if p["DIAG"] == 3:
            self.stamp(6)
        u = 0
        while u < 36:
            wq_tick()
            did = 0
            while u < 36 and did < 2 and (len(wl) == 36 or (u < len(wl) and wl[u] <= land[0])):
                a = 48 + 4 * (u & 1)
                for r in range(4):
                    self.dpp("v_and_b32", f"v{a+r}", f"v{16 + u // 16}", f"v{32+r}", f"row_newbcast:{u % 16}")
                if wl[u] > land[0]:
                    self.wait_vm(wl[u])
                    land[0] = wl[u]
                c = "0" if u == 0 else "v[44:47]"
                A(f"v_mfma_f32_16x16x32_bf16 v[44:47], v[{a}:{a+3}], v[{96+4*u}:{99+4*u}], {c}")
                u += 1
                did += 1
        A("v_lshlrev_b32 v4, 5, v11")
        A("v_lshl_add_u32 v4, v10, 4, v4")
        A("s_lshl_b32 s10, s3, 9")
        A(f"s_add_u32 s10, s10, {L_QP}")
        A("v_add_u32 v4, s10, v4")
        self.nop(4)
        A("s_mov_b64 exec, 0xffffffff")
        A("ds_write_b128 v4, v[44:47]")
        A("s_mov_b64 exec, -1")
        A("s_waitcnt lgkmcnt(0)")
        if p["DIAG"] == 3:
            self.stamp(7)
        A("s_barrier")
        A(f"s_setprio {p['AUXPRIO']}")
        lskip = self.lab("noarr")
        NC = p["CLR"]
        A(f"s_cmp_lg_u32 s3, {9 if p['SKIP'] & 4 else 0}")
        A(f"s_cbranch_scc1 {lskip}")
        if NC < 256:
            A(f"s_cmp_lt_u32 s2, {256 - NC}")
            A(f"s_cbranch_scc1 {lskip}")
        A(f"s_setprio {p['CLRPRIO']}")
        for i in range(4):
            A(f"v_mov_b32 v{36+i}, -1")
        A(f"s_sub_u32 s11, s2, {256 - NC}")
        per = WS_CLR // NC
        assert per % 1024 == 0 and per * NC == WS_CLR
        A(f"s_mul_i32 s10, s11, {per}")
        for k in range(per // 1024):
            A(f"buffer_store_dwordx4 v[36:39], v20, s[56:59], s10 offen offset:{1024*(k%4)} sc1")
            if k % 4 == 3:
                A("s_add_u32 s10, s10, 4096")
        if NC < 256:
            A("s_lshl_b32 s11, s11, 2")
        A("v_mov_b32 v4, s11")
        A("v_mov_b32 v5, 1")
        A("s_waitcnt vmcnt(0)")
        A("s_mov_b64 exec, 1")
        A(f"global_store_{'byte' if NC == 256 else 'dword'} v4, v5, s[36:37] sc1")
        A("s_mov_b64 exec, -1")
        A(f"s_setprio {p['AUXPRIO']}")
        L(lskip)
        for i in range(9):
            A(f"v_add_u32 v4, {64*i}, v1")
            A("v_mul_u32_u24 v5, 3641, v4")
            A("v_lshrrev_b32 v5, 16, v5")
            A("v_mul_u32_u24 v6, 18, v5")
            A("v_sub_u32 v6, v4, v6")
            A("v_mul_u32_u24 v5, 1152, v5")
            A(f"v_lshl_add_u32 v{40+i}, v6, 4, v5")
        A(f"s_mul_i32 s10, s4, {128*1152}")
        A("s_mul_i32 s11, s3, 288")
        A("s_add_u32 s10, s10, s11")
        A("s_mul_i32 s12, s3, 9216")
        A(f"s_add_u32 s12, s12, {L_WOS}")
        A("v_lshrrev_b32 v4, 2, v1")
        A("v_and_b32 v4, 3, v4")
        A("v_lshl_add_u32 v4, v10, 3, v4")
        A("v_mul_u32_u24 v4, 288, v4")
        A("v_and_b32 v5, 3, v1")
        A("v_lshl_add_u32 v4, v5, 3, v4")
        A("v_add_u32 v7, s12, v4")
        for s in range(4):
            if p["DIAG"] == 2 and s == 0:
                self.stamp(5)
            for i in range(9):
                A(f"s_add_u32 m0, s12, {1024*i}")
                if i >= p["LA2"]:
                    A(f"s_waitcnt vmcnt({p['LA2']-1})")
                A(f"buffer_load_dwordx4 v{40+i}, s[44:47], s10 offen {p['WPOL']} lds")
            if p["DIAG"] == 2 and s == 0:
                self.stamp(6)
            A("s_waitcnt vmcnt(0)")
            if p["DIAG"] == 2 and s == 0:
                self.stamp(7)
            for t in range(9):
                r = 96 + 4 * (s * 9 + t)
                A(f"ds_read_b64_tr_b16 v[{r}:{r+1}], v7 offset:{32*t}")
                A(f"ds_read_b64_tr_b16 v[{r+2}:{r+3}], v7 offset:{32*t + 1152}")
            A("s_waitcnt lgkmcnt(0)")
            if p["DIAG"] == 2 and s == 0:
                self.stamp(9)
            if s < 3:
                A(f"s_add_u32 s10, s10, {32*1152}")
        if p["DIAG"] >= 1:
            self.stamp(8)
        A("v_and_b32 v4, 3, v1")
        A("v_lshlrev_b32 v4, 8, v4")
        A("v_lshl_add_u32 v4, v10, 4, v4")
        A(f"v_add_u32 v16, {L_OP}, v4")
        A("v_lshlrev_b32 v4, 4, v10")
        A(f"v_mov_b32 v5, {OOB}")
        A("v_cmp_eq_u32 vcc, 0, v11")
        A("s_mul_i32 s12, s6, 36")
        A("s_mul_i32 s11, s3, 9")
        A("v_cndmask_b32 v17, v5, v4, vcc")
        A("s_add_u32 s12, s12, s11")
        A("s_lshl_b32 s12, s12, 7")
        A("s_lshl_b32 s11, s4, 2")
        A("s_add_u32 s12, s12, s11")
        A("s_add_u32 s12, s12, s5")
        A("s_lshl_b32 s12, s12, 6")
        A(f"s_add_u32 s12, s12, {WS_Y1}")
        A("s_setprio 3")
        A("s_barrier")
        for s in range(4):
            A(f"ds_read_b128 v[{20+4*s}:{23+4*s}], v16 offset:{64*s}")

        def post(t):
            d = 40 + 4 * t
            for r in range(4):
                self.dpp("v_add_f32", f"v{d+r}", f"v{d+r}", f"v{d+r}", "quad_perm:[1,0,3,2]")
            for r in range(4):
                self.dpp("v_add_f32", f"v{d+r}", f"v{d+r}", f"v{d+r}", "quad_perm:[2,3,0,1]")
            A(f"buffer_store_dwordx4 v[{d}:{d+3}], v17, s[56:59], s12 offen sc1")
            if t < 8:
                A("s_add_u32 s12, s12, 8192")

        for t in range(9):
            d = 40 + 4 * t
            for s in range(4):
                if t == 0:
                    A(f"s_waitcnt lgkmcnt({3-s})")
                r = 96 + 4 * (s * 9 + t)
                c = "0" if s == 0 else f"v[{d}:{d+3}]"
                A(f"v_mfma_f32_16x16x32_bf16 v[{d}:{d+3}], v[{r}:{r+3}], v[{20+4*s}:{23+4*s}], {c}")
            if t >= 2:
                post(t - 2)
        post(7)
        post(8)
        if p["STAMPS"]:
            self.stamp(8, True)
            A("s_cmp_lg_u32 s3, 0")
            A("s_cbranch_scc1 L_end")
            self.store_stamps([[8], [8], [5, 6, 7, 8, 9], [5, 6, 7, 8, 9]][p['DIAG']])
        A("s_endpgm")


def main():
    args = sys.argv[1:]
    out = args[0]
    kw = {}
    for a in args[1:]:
        k, v = a.split("=")
        try:
            v = int(v)
        except ValueError:
            pass
        kw[k] = v
    assert all((p * 3641) >> 16 == p // 18 for p in range(576))
    open(out, "w").write(Gen(**kw).gen())


if __name__ == "__main__":
    main()
```

```python
import sys, struct, os
sys.path.insert(0, os.path.dirname(os.path.abspath(__file__)))
import hz

NAME = "sequential_preLN__mha_block_cached__glu_gated_geglu__decode"

HEADER = """; Kernarg layout for this problem (96 bytes, ptrs only, base s[0:1]):
"""


def f32(x):
    return "0x%08x" % struct.unpack("<I", struct.pack("<f", x))[0]


LOG2E = 1.4426950408889634
WS_STATS = 0
WS_H = 8192
WS_Y1 = 16384
WS_Y2 = WS_Y1 + 2 * 36 * 128 * 64
WS_END = WS_Y2 + 2 * 36 * 144 * 64
WS_CLR = 5120 * 256
assert WS_END <= WS_CLR
WS_SIZE = WS_CLR
OOB = 0x40000000
L_G = 0
L_U = 36864
L_DN = 73728
L_PARK = 0
L_WOS = 114688
L_QP = L_WOS + 36864
L_OP = L_QP + 2048
L_HN = L_OP + 1024
L_ACT = L_HN + 2560
L_END = L_ACT + 1024
STAMP_OFF = 480 << 20
SPIN = 0x4000


class Gen:
    def __init__(self, **p):
        self.p = dict(RING=10, NP=7, L=6, L0=5, PRE=14, BURST=2, CPI=1, SMT=8, CNT_M=110, STAT_M=232, DPU=1, LD=8,
                      KPOL="nt", VPOL="nt", WPOL="nt", MPOL="nt", STAMPS=0, DIAG=0, HMAP=0, SKIP=0,
                      AUXPRIO=0, AUXPRIO0=0, SPRIO=1, LA=5, LA2=3, CLR=256, CLRPRIO=2)
        self.p.update(p)
        self.o = []
        self.vm = 0
        self.nlab = 0
        self.nstamp = 0

    def A(self, s):
        if s.startswith("s_nop") or s.startswith("s_sleep"):
            return
        self.o.append("  " + s)

    def L(self, s):
        self.o.append(s + ":")

    def lab(self, base):
        self.nlab += 1
        return f"L_{base}_{self.nlab}"

    def V(self, s):
        self.A(s)
        if "_store" not in s:
            self.vm += 1
        return self.vm

    def wait_vm(self, seq):
        n = self.vm - seq
        assert 0 <= n <= 63, n
        self.A(f"s_waitcnt vmcnt({n})")

    def nop(self, n):
        while n > 0:
            k = min(n, 16)
            self.A(f"s_nop {k-1}")
            n -= k

    def srd(self, d, lo, hi, nrec):
        A = self.A
        A(f"s_mov_b32 s{d}, {lo}")
        A(f"s_and_b32 s{d+1}, {hi}, 0xffff")
        A(f"s_mov_b32 s{d+2}, {nrec}")
        A(f"s_mov_b32 s{d+3}, 0x20000")

    def stamp(self, idx, tail=False):
        if not self.p["STAMPS"] or (tail and self.p["DIAG"]):
            return
        self.A(f"s_memrealtime s[{80+2*idx}:{81+2*idx}]")
        self.A("s_waitcnt lgkmcnt(0)")

    def store_stamps(self, idxs):
        if not self.p["STAMPS"]:
            return
        A = self.A
        n = self.p["STAMPS"]
        A(f"s_add_u32 s72, s38, {STAMP_OFF}")
        A("s_addc_u32 s73, s39, 0")
        A(f"s_mul_i32 s74, s2, {8*n}")
        A("v_mov_b32 v4, s74")
        A("s_mov_b64 exec, 1")
        for i in idxs:
            A(f"v_mov_b32 v6, s{80+2*i}")
            A(f"v_mov_b32 v7, s{81+2*i}")
            A(f"global_store_dwordx2 v4, v[6:7], s[72:73] offset:{8*i}")
            A("s_nop 1")
        A("s_mov_b64 exec, -1")

    def dpp(self, op, dst, src0, src1, ctrl):
        if src1 is None:
            self.A(f"{op}_dpp {dst}, {src0} {ctrl} row_mask:0xf bank_mask:0xf")
        else:
            self.A(f"{op}_dpp {dst}, {src0}, {src1} {ctrl} row_mask:0xf bank_mask:0xf")

    def row_reduce(self, op, regs, rors):
        for r in rors:
            pad = max(0, 2 - (len(regs) - 1))
            self.nop(pad)
            for v in regs:
                self.dpp(op, v, v, v, f"row_ror:{r}")

    def cross_rows(self, op, v, tmp):
        A = self.A
        A(f"v_mov_b32 {tmp}, {v}")
        self.nop(2)
        A(f"v_permlane32_swap_b32 {v}, {tmp}")
        A(f"{op} {v}, {v}, {tmp}")
        A(f"v_mov_b32 {tmp}, {v}")
        self.nop(2)
        A(f"v_permlane16_swap_b32 {v}, {tmp}")
        A(f"{op} {v}, {v}, {tmp}")

    def round_bf16(self, dst, src):
        self.A(f"v_cvt_pk_bf16_f32 {dst}, {src}, {src}")
        self.A(f"v_and_b32 {dst}, 0xffff0000, {dst}")

    def ln_scalars(self, vsum_sq, vmean, vmb, vrden, t):
        A = self.A
        A(f"v_mul_f32 {t}, {f32(1.0/576)}, {vsum_sq}")
        self.round_bf16(t, t)
        A(f"v_add_f32 {t}, {f32(1e-5)}, {t}")
        self.round_bf16(t, t)
        A(f"v_sqrt_f32 {t}, {t}")
        self.round_bf16(vmb, vmean)
        self.round_bf16(t, t)
        A(f"v_rcp_f32 {vrden}, {t}")
        A("s_nop 0")

    def gen(self):
        p = self.p
        A, L, V = self.A, self.L, self.V
        o = self.o
        o.append(HEADER.rstrip("\n"))
        o.append(f"; @launch grid=(256,1,1) block=(512,1,1) lds={L_END}")
        o.append('.amdgcn_target "amdgcn-amd-amdhsa--gfx950"')
        o.append(".text")
        o.append(f".globl {NAME}_kernel")
        o.append(".p2align 8")
        o.append(f".type {NAME}_kernel,@function")
        L(f"{NAME}_kernel")
        A("s_cmp_ge_u32 s2, 256")
        A("s_cbranch_scc1 L_end")
        A("s_load_dwordx16 s[16:31], s[0:1], 0")
        A("s_load_dwordx8 s[32:39], s[0:1], 64")
        if p["STAMPS"]:
            A("s_memrealtime s[80:81]")
        A("v_and_b32 v1, 63, v0")
        A("v_lshrrev_b32 v2, 6, v0")
        A("s_lshr_b32 s8, s2, 3")
        A("v_readfirstlane_b32 s3, v2")
        A("s_and_b32 s9, s2, 7")
        hm = p["HMAP"]
        if hm == 0:
            A("s_and_b32 s4, s2, 31")
            A("s_lshr_b32 s10, s2, 5")
        elif hm == 9:
            A("s_lshr_b32 s4, s2, 2")
            A("s_and_b32 s4, s4, 31")
            A("s_lshr_b32 s10, s2, 7")
            A("s_lshl_b32 s10, s10, 2")
            A("s_and_b32 s11, s2, 3")
            A("s_add_u32 s10, s10, s11")
        else:
            lg = hm + 1
            A(f"s_lshr_b32 s4, s9, {lg-2}")
            A(f"s_lshl_b32 s4, s4, {lg}")
            A(f"s_and_b32 s10, s8, {(1<<lg)-1}")
            A("s_add_u32 s4, s4, s10")
            A(f"s_and_b32 s10, s9, {(1<<(lg-2))-1}")
            A(f"s_lshl_b32 s10, s10, {5-lg}")
            A(f"s_lshr_b32 s11, s8, {lg}")
            A("s_add_u32 s10, s10, s11")
        A("s_and_b32 s5, s10, 3")
        A("s_lshr_b32 s6, s10, 2")
        A("s_lshl_b32 s7, s6, 5")
        A("s_add_u32 s7, s7, s4")
        A("v_lshrrev_b32 v10, 4, v1")
        A("v_and_b32 v11, 15, v1")
        A("s_cmp_ge_u32 s3, 4")
        A("s_cbranch_scc1 L_aux")
        self.stream()
        self.aux()
        L("L_end")
        A("s_endpgm")
        o.append('.section .rodata,"a"')
        o.append(".p2align 6")
        o.append(f".amdhsa_kernel {NAME}_kernel")
        o.append("  .amdhsa_next_free_vgpr 256")
        o.append("  .amdhsa_next_free_sgpr 102")
        o.append("  .amdhsa_accum_offset 256")
        o.append("  .amdhsa_group_segment_fixed_size 0")
        o.append("  .amdhsa_kernarg_size 96")
        o.append("  .amdhsa_user_sgpr_count 2")
        o.append("  .amdhsa_user_sgpr_kernarg_segment_ptr 1")
        o.append("  .amdhsa_system_sgpr_workgroup_id_x 1")
        o.append(".end_amdhsa_kernel")
        lines = "\n".join(o).split("\n")
        lines, tot = hz.run(lines, fix=True)
        return "\n".join(lines) + "\n"

    def masks(self):
        A = self.A
        A("v_and_b32 v4, 1, v11")
        A("v_lshlrev_b32 v4, 4, v4")
        A("v_mov_b32 v5, 0xffff")
        A("v_lshlrev_b32 v4, v4, v5")
        A("v_lshrrev_b32 v5, 1, v11")
        for r in range(4):
            A(f"v_cmp_eq_u32 vcc, {r}, v5")
            A("s_nop 1")
            A(f"v_cndmask_b32 v{32+r}, 0, v4, vcc")

    def stream(self):
        p = self.p
        A, L, V = self.A, self.L, self.V
        RING = p["RING"]
        self.vm = 0
        A(f"s_setprio {p['SPRIO']}")
        A("v_lshrrev_b32 v4, 2, v1")
        A("v_and_b32 v4, 3, v4")
        A("v_lshlrev_b32 v5, 8, v4")
        A("v_lshlrev_b32 v6, 6, v10")
        A("v_and_b32 v7, 3, v1")
        A("v_lshlrev_b32 v7, 4, v7")
        A("v_add3_u32 v2, v5, v6, v7")
        A("s_lshl_b32 s10, s3, 12")
        A("v_add_u32 v2, s10, v2")
        A("v_lshlrev_b32 v3, 4, v1")
        A("v_add_u32 v3, s10, v3")
        A("s_lshl_b32 s10, s7, 21")
        A("s_lshl_b32 s11, s5, 19")
        A("s_add_u32 s10, s10, s11")
        A("s_waitcnt lgkmcnt(0)")
        A("s_add_u32 s12, s18, s10")
        A("s_addc_u32 s13, s19, 0")
        self.srd(40, "s12", "s13", 1 << 19)
        A("s_add_u32 s12, s20, s10")
        A("s_addc_u32 s13, s21, 0")
        self.srd(44, "s12", "s13", 1 << 19)

        NP, LS = p["NP"], p["L"]
        A(f"s_mul_i32 s13, s3, {NP*4096}")
        st = dict(m=0, landed=0, free=list(range(RING)), slot={}, seq={}, dma=0)
        self.st = st
        extra = {}

        def pace(lim):
            if self.vm - st["landed"] > lim - 1:
                A(f"s_waitcnt vmcnt({lim-1})")
                st["landed"] = self.vm - (lim - 1)

        def wait_seq(q):
            if st["landed"] < q:
                self.wait_vm(q)
                st["landed"] = q

        def tick(lim=None):
            m = st["m"]
            if m >= 256:
                return False
            n, t = divmod(m, 4)
            if t == 0 and n >= NP:
                if not st["free"]:
                    return False
                st["slot"][n] = st["free"].pop(0)
            pace(lim or LS)
            srd = "s[40:43]" if n < 32 else "s[44:47]"
            voff = "v2" if n < 32 else "v3"
            j = n % 32
            so = "s14" if j else "0"
            if t == 0 and j:
                A(f"s_mov_b32 s14, {j*16384}")
            if n < NP:
                if t == 0:
                    A(f"s_add_u32 m0, s13, {L_PARK + n*4096}")
                st["seq"][m] = V(f"buffer_load_dwordx4 {voff}, {srd}, {so} offen offset:{1024*t} {p['KPOL']} lds")
            else:
                r = 96 + 16 * st["slot"][n] + 4 * t
                st["seq"][m] = V(f"buffer_load_dwordx4 v[{r}:{r+3}], {voff}, {srd}, {so} offen offset:{1024*t} {p['KPOL'] if n < 32 else p['VPOL']}")
            st["m"] = m + 1
            if m == p["CNT_M"]:
                A("v_lshlrev_b32 v60, 2, v1")
                extra["cnt"] = V("global_load_dword v61, v60, s[36:37] sc1")
            if m == p["STAT_M"]:
                self.stat_load(extra)
            return True

        for _ in range(p["L0"]):
            tick(p["L0"])
        self.srd(56, "s38", "s39", WS_SIZE)
        self.masks()
        A("v_mov_b32 v12, 0xff800000")
        A("s_mul_i32 s15, s9, 18")
        A("s_add_u32 s15, s15, s8")
        A("v_lshlrev_b32 v8, 4, v1")
        A("v_add_u32 v8, s13, v8")
        A("v_and_b32 v9, 3, v1")
        A("v_lshl_add_u32 v9, v10, 2, v9")
        A("v_lshlrev_b32 v9, 5, v9")
        A(f"v_add_u32 v9, {L_QP}, v9")
        while st["m"] < 4 * p["PRE"]:
            assert tick(p["L0"])
        self.stamp(1)
        A("s_barrier")
        self.stamp(2)
        for a in range(4):
            A(f"ds_read_b128 v[{64+8*a}:{67+8*a}], v9 offset:{a*512}")
            A(f"ds_read_b128 v[{68+8*a}:{71+8*a}], v9 offset:{a*512+16}")
        for _ in range(p["BURST"]):
            tick(64)
        A("s_waitcnt lgkmcnt(0)")
        for i in range(8):
            A(f"v_add_f32 v{64+i}, v{64+i}, v{72+i}")
            A(f"v_add_f32 v{80+i}, v{80+i}, v{88+i}")
        for i in range(8):
            A(f"v_add_f32 v{64+i}, v{64+i}, v{80+i}")
        for i in range(4):
            A(f"v_cvt_pk_bf16_f32 v{56+i}, v{64+2*i}, v{65+2*i}")
        A("v_lshrrev_b32 v4, 2, v1")
        A("v_and_b32 v4, 3, v4")
        for t in range(4):
            A(f"v_cmp_eq_u32 vcc, {t}, v4")
            for i in range(4):
                A(f"v_cndmask_b32 v{16+4*t+i}, 0, v{56+i}, vcc")

        def score(j, d):
            self.dpp("v_mov_b32", "v4", f"v{d}", None, "quad_perm:[0,0,0,0]")
            self.dpp("v_mov_b32", "v5", f"v{d+2}", None, "quad_perm:[2,2,2,2]")
            self.dpp("v_add_f32", "v4", f"v{d+1}", "v4", "quad_perm:[1,1,1,1]")
            self.dpp("v_add_f32", "v5", f"v{d+3}", "v5", "quad_perm:[3,3,3,3]")
            A("v_add_f32 v4, v4, v5")
            self.round_bf16("v4", "v4")
            A(f"v_mul_f32 v4, {f32(128 ** -0.5)}, v4")
            self.round_bf16(f"v{64+j}", "v4")
            A(f"v_max_f32 v12, v12, v{64+j}")

        ring_todo = list(range(NP, 32))
        parked = list(range(NP))
        unparked = []
        kdone = 0
        pend = None

        def kgroup(n):
            nonlocal kdone, pend
            d = 36 + 4 * (kdone & 1)
            for t in range(4):
                r = 96 + 16 * st["slot"][n] + 4 * t
                c = "0" if t == 0 else f"v[{d}:{d+3}]"
                A(f"v_mfma_f32_16x16x32_bf16 v[{d}:{d+3}], v[{r}:{r+3}], v[{16+4*t}:{19+4*t}], {c}")
            if pend:
                score(*pend)
            pend = (n, d)
            kdone += 1
            st["free"].append(st["slot"][n])

        def kavail(n):
            q = st["seq"].get(4 * n + 3)
            return q is not None and q <= st["landed"]

        while kdone < 32:
            ok = tick()
            did = 0
            while did < p["CPI"]:
                if ring_todo and kavail(ring_todo[0]):
                    kgroup(ring_todo.pop(0))
                elif unparked:
                    A("s_waitcnt lgkmcnt(0)")
                    kgroup(unparked.pop(0))
                else:
                    break
                did += 1
            if parked and not unparked and len(st["free"]) >= 2 and kavail(parked[0]):
                n = parked.pop(0)
                st["slot"][n] = st["free"].pop(0)
                for t in range(4):
                    r = 96 + 16 * st["slot"][n] + 4 * t
                    A(f"ds_read_b128 v[{r}:{r+3}], v8 offset:{L_PARK + n*4096 + 1024*t}")
                unparked.append(n)
                did += 1
            if not ok and not did:
                wait_seq(st["seq"][4 * ring_todo[0] + 3])
        score(*pend)
        self.stamp(3)
        self.row_reduce("v_max_f32", ["v12"], [4, 8])
        self.cross_rows("v_max_f32", "v12", "v4")
        A(f"v_mul_f32 v13, {f32(LOG2E)}, v12")
        A(f"s_mov_b32 s10, {f32(LOG2E)}")
        A("v_mov_b32 v14, 0")
        A("v_mov_b32 v15, 0")
        for j in range(0, 32, 2):
            if j % p["SMT"] == 0:
                tick()
            A(f"v_fma_f32 v4, v{64+j}, s10, -v13")
            A(f"v_fma_f32 v5, v{65+j}, s10, -v13")
            A("v_exp_f32 v4, v4")
            A("v_exp_f32 v5, v5")
            A("v_add_f32 v14, v14, v4")
            A("v_add_f32 v15, v15, v5")
            A(f"v_cvt_pk_bf16_f32 v{64+j}, v4, v4")
            A(f"v_cvt_pk_bf16_f32 v{65+j}, v5, v5")
        tick()
        A("v_add_f32 v14, v14, v15")
        self.row_reduce("v_add_f32", ["v14"], [4, 8])
        self.cross_rows("v_add_f32", "v14", "v4")
        wait_seq(extra["cnt"])
        lok, lsp = self.lab("cntok"), self.lab("cntspin")
        A("s_mov_b32 s11, 0")
        L(lsp)
        if p["CLR"] == 256:
            A("v_cmp_eq_u32 vcc, 0x01010101, v61")
        else:
            A("v_cmp_ne_u32 vcc, 0, v61")
        A("s_bcnt1_i32_b64 s10, vcc")
        A(f"s_cmp_ge_u32 s10, {0 if p['SKIP'] & 4 else min(p['CLR'], 64)}")
        A(f"s_cbranch_scc1 {lok}")
        A("s_add_u32 s11, s11, 1")
        A(f"s_cmp_ge_u32 s11, {SPIN}")
        A(f"s_cbranch_scc1 {lok}")
        A("global_load_dword v61, v60, s[36:37] sc1")
        A("s_waitcnt vmcnt(0)")
        A(f"s_branch {lsp}")
        L(lok)
        if p["DIAG"] == 1:
            self.stamp(5)
        A("s_lshl_b32 s10, s7, 7")
        A("s_lshl_b32 s11, s5, 5")
        A("s_add_u32 s10, s10, s11")
        A("s_lshl_b32 s11, s3, 3")
        A("s_add_u32 s10, s10, s11")
        A("v_cmp_eq_u32 vcc, 0, v1")
        A(f"v_mov_b32 v4, {OOB}")
        A("v_mov_b32 v6, v13")
        A("v_cndmask_b32 v4, v4, v1, vcc")
        A("v_mov_b32 v7, v14")
        V(f"buffer_store_dwordx2 v[6:7], v4, s[56:59], s10 offen offset:{WS_STATS} sc1")
        A("v_lshlrev_b32 v8, 4, v11")
        A("v_lshl_add_u32 v8, v10, 3, v8")
        A("s_lshl_b32 s10, s3, 8")
        A(f"s_add_u32 s10, s10, {L_OP}")
        A("v_add_u32 v8, s10, v8")
        self.mlp_dma_setup()
        st["vu"] = 128
        st["stat_done"] = False

        def vunit(wait=False):
            m = st["vu"]
            n, u = divmod(m, 4)
            j = n - 32
            a = 48 + 4 * (u & 1)
            for r in range(4):
                self.dpp("v_and_b32", f"v{a+r}", f"v{64+j}", f"v{32+r}", f"row_newbcast:{4*u}")
            if wait:
                wait()
            r = 96 + 16 * st["slot"][n] + 4 * u
            c = "0" if m == 128 else "v[44:47]"
            A(f"v_mfma_f32_16x16x32_bf16 v[44:47], v[{a}:{a+3}], v[{r}:{r+3}], {c}")
            st["vu"] = m + 1
            if u == 3:
                st["free"].append(st["slot"][n])
                if p["DIAG"] == 1 and j == 12:
                    self.stamp(6)
                if p["DIAG"] == 1 and j == 24:
                    self.stamp(7)

        def vavail():
            q = st["seq"].get(st["vu"])
            return q is not None and q <= st["landed"]

        def statchk():
            if not st["stat_done"] and "stat" in extra and extra["stat"] <= st["landed"]:
                self.stat_use(extra)
                st["stat_done"] = True

        while st["m"] < 256:
            ok = tick()
            did = 0
            while did < 4 * p["CPI"] and vavail():
                vunit()
                did += 1
            statchk()
            if not ok and not did:
                wait_seq(st["seq"][st["vu"]])
        assert st["stat_done"]

        def finish():
            self.stamp(4)
            for r in range(4):
                A(f"v_mul_f32 v{44+r}, v{44+r}, v9")
            A("v_cvt_pk_bf16_f32 v6, v44, v45")
            A("v_cvt_pk_bf16_f32 v7, v46, v47")
            A("s_mov_b64 exec, 0xffffffff")
            A("ds_write_b64 v8, v[6:7]")
            A("s_mov_b64 exec, -1")
            A("s_waitcnt lgkmcnt(0)")
            A("s_barrier")

        import copy
        A("s_cmp_lt_u32 s8, 18")
        A("s_cbranch_scc1 L_mlp_drain")
        save = (copy.deepcopy(st), self.vm)
        while st["vu"] < 256:
            vunit(lambda: wait_seq(st["seq"][st["vu"]]))
        finish()
        A("s_cmp_lg_u32 s3, 0")
        A("s_cbranch_scc1 L_end")
        A("s_cmp_lt_u32 s8, 27")
        A("s_cbranch_scc1 L_red")
        self.store_stamps([0, 1, 2, 3, 4] + ([5, 6, 7] if p['DIAG'] == 1 else []))
        A("s_endpgm")
        L("L_mlp_drain")
        st.clear()
        st.update(save[0])
        self.vm = save[1]
        ndma = 0
        while st["vu"] < 256:
            def w():
                nonlocal ndma
                wait_seq(st["seq"][st["vu"]])
                for _ in range(p["DPU"]):
                    self.mlp_dma(ndma)
                    ndma += 1
            vunit(w)
        finish()
        while ndma < 27:
            pace(p["LD"])
            self.mlp_dma(ndma)
            ndma += 1
        self.mlp()
        self.red()

    def stat_load(self, extra):
        A = self.A
        A("v_lshlrev_b32 v58, 3, v11")
        A("s_lshl_b32 s75, s7, 7")
        extra["stat"] = self.V(f"buffer_load_dwordx2 v[56:57], v58, s[56:59], s75 offen offset:{WS_STATS} sc1")

    def stat_use(self, extra):
        A, L = self.A, self.L
        lok, lsp = self.lab("stok"), self.lab("stspin")
        A("s_mov_b32 s11, 0")
        L(lsp)
        A("v_max_u32 v4, v56, v57")
        A("v_cmp_eq_u32 vcc, -1, v4")
        A(f"s_cbranch_vccz {lok}")
        A("s_add_u32 s11, s11, 1")
        A(f"s_cmp_ge_u32 s11, {SPIN}")
        A(f"s_cbranch_scc1 {lok}")
        A("s_sleep 2")
        A(f"buffer_load_dwordx2 v[56:57], v58, s[56:59], s75 offen offset:{WS_STATS} sc1")
        A("s_waitcnt vmcnt(0)")
        A(f"s_branch {lsp}")
        L(lok)
        A("v_mov_b32 v4, v56")
        self.row_reduce("v_max_f32", ["v4"], [1, 2, 4, 8])
        A("v_sub_f32 v5, v56, v4")
        A("v_sub_f32 v6, v13, v4")
        A("v_exp_f32 v5, v5")
        A("v_exp_f32 v6, v6")
        A("s_nop 0")
        A("v_mul_f32 v5, v5, v57")
        self.row_reduce("v_add_f32", ["v5"], [1, 2, 4, 8])
        A("v_rcp_f32 v5, v5")
        A("s_nop 0")
        A("v_mul_f32 v9, v5, v6")

    def mlp_dma_setup(self):
        A = self.A
        A("v_lshrrev_b32 v4, 2, v1")
        A("v_mul_u32_u24 v4, 9216, v4")
        A("v_lshrrev_b32 v5, 5, v1")
        A("v_and_b32 v6, 3, v1")
        A("v_xor_b32 v5, v5, v6")
        A("v_lshl_add_u32 v62, v5, 4, v4")
        A("v_xor_b32 v5, 2, v5")
        A("v_lshl_add_u32 v63, v5, 4, v4")
        A("v_lshlrev_b32 v59, 4, v1")
        self.srd(48, "s28", "s29", 576 * 9216)
        self.srd(52, "s30", "s31", 576 * 9216)
        self.srd(60, "s32", "s33", 4608 * 1152)
        A(f"s_mul_i32 s76, s3, {9*16*9216}")
        A("s_lshl_b32 s77, s15, 6")
        A("s_add_u32 s76, s76, s77")
        A("s_mul_i32 s77, s15, 36864")
        A("s_mul_i32 s78, s3, 9216")
        A("s_add_u32 s77, s77, s78")

    def mlp_dma(self, k):
        A, V = self.A, self.V
        pol = self.p["MPOL"]
        if k < 18:
            i = k // 2
            if k % 2 == 0:
                A(f"s_add_u32 m0, s78, {L_G + 1024*i}")
                V(f"buffer_load_dwordx4 v62, s[48:51], s76 offen {pol} lds")
            else:
                A(f"s_add_u32 m0, s78, {L_U + 1024*i}")
                V(f"buffer_load_dwordx4 v63, s[52:55], s76 offen {pol} lds")
                if i < 8:
                    A(f"s_add_u32 s76, s76, {16*9216}")
        else:
            i = k - 18
            A(f"s_add_u32 m0, s78, {L_DN + 1024*i}")
            V(f"buffer_load_dwordx4 v59, s[60:63], s77 offen {pol} lds")
            if i < 8:
                A("s_add_u32 s77, s77, 1024")

    def mlp(self):
        p = self.p
        A, L, V = self.A, self.L, self.V
        A("s_waitcnt vmcnt(0)")
        if p["DIAG"] == 4:
            self.stamp(9)
        A("s_barrier")
        A("v_lshrrev_b32 v4, 2, v1")
        A("v_and_b32 v4, 3, v4")
        A("v_lshl_add_u32 v4, v10, 3, v4")
        A("v_and_b32 v5, 1, v1")
        A("v_and_b32 v6, 1, v10")
        A("v_lshlrev_b32 v7, 1, v5")
        A("v_xor_b32 v6, v6, v7")
        A("v_xor_b32 v6, s3, v6")
        A("v_lshlrev_b32 v6, 4, v6")
        A("v_lshl_add_u32 v6, v4, 6, v6")
        A(f"v_mul_u32_u24 v5, {L_U - L_G}, v5")
        A("v_add_u32 v6, v6, v5")
        A("v_and_b32 v5, 2, v1")
        A("v_lshl_add_u32 v6, v5, 2, v6")
        for s in range(18):
            r = 96 + 4 * s
            A(f"ds_read_b64_tr_b16 v[{r}:{r+1}], v6 offset:{L_G + 2048*s}")
            A(f"ds_read_b64_tr_b16 v[{r+2}:{r+3}], v6 offset:{L_G + 2048*s + 256}")
        A("v_mul_u32_u24 v7, 1152, v4")
        A("v_and_b32 v5, 3, v1")
        A("v_lshl_add_u32 v7, v5, 3, v7")
        A("s_mul_i32 s10, s3, 288")
        A(f"s_add_u32 s10, s10, {L_DN}")
        A("v_add_u32 v7, s10, v7")
        for t in range(9):
            r = 168 + 4 * t
            A(f"ds_read_b64_tr_b16 v[{r}:{r+1}], v7 offset:{32*t}")
            A(f"ds_read_b64_tr_b16 v[{r+2}:{r+3}], v7 offset:{32*t + 4608}")
        A("v_and_b32 v4, 1, v1")
        A("v_mul_u32_u24 v4, 1152, v4")
        A("v_lshl_add_u32 v4, v10, 4, v4")
        A(f"v_add_u32 v16, {L_HN}, v4")
        A("v_lshlrev_b32 v4, 6, v11")
        A("v_lshl_add_u32 v5, v10, 4, v4")
        A(f"v_add_u32 v17, {L_ACT}, v5")
        A("v_and_b32 v5, 1, v10")
        A("v_and_b32 v6, 2, v10")
        A("v_lshl_add_u32 v5, v6, 1, v5")
        A("v_lshl_add_u32 v5, v5, 1, v4")
        A("s_lshl_b32 s10, s3, 4")
        A(f"s_add_u32 s10, s10, {L_ACT}")
        A("v_add_u32 v18, s10, v5")
        A(f"v_mul_u32_u24 v4, {36*144*64}, v11")
        A("v_lshl_add_u32 v4, v10, 4, v4")
        A(f"v_mov_b32 v5, {OOB}")
        A("v_cmp_gt_u32 vcc, 2, v11")
        A("s_mul_i32 s12, s3, 9")
        A("s_mul_i32 s12, s12, 144")
        A("v_cndmask_b32 v19, v5, v4, vcc")
        A("s_add_u32 s12, s12, s15")
        A("s_lshl_b32 s12, s12, 6")
        A(f"s_add_u32 s12, s12, {WS_Y2}")
        A("s_waitcnt lgkmcnt(0)")
        self.stamp(5, True)
        A("s_cmp_ge_u32 s3, 2")
        A("s_cbranch_scc1 L_mlp_hn")
        A("v_lshlrev_b32 v20, 4, v1")
        A("v_lshlrev_b32 v21, 2, v1")
        A("s_mul_i32 s10, s3, 2304")
        A(f"s_add_u32 s10, s10, {WS_H}")
        A("s_mov_b32 s11, 0")
        L("L_hpoll")
        A("buffer_load_dwordx4 v[24:27], v20, s[56:59], s10 offen sc1")
        A("buffer_load_dwordx4 v[28:31], v20, s[56:59], s10 offen offset:1024 sc1")
        A("buffer_load_dword v32, v21, s[56:59], s10 offen offset:2048 sc1")
        A("s_add_u32 s11, s11, 1")
        A(f"s_cmp_ge_u32 s11, {SPIN}")
        A("s_waitcnt vmcnt(0)")
        A("s_cbranch_scc1 L_hok")
        A("v_max3_u32 v4, v24, v25, v26")
        A("v_max3_u32 v5, v27, v28, v29")
        A("v_max3_u32 v6, v30, v31, v32")
        A("v_max3_u32 v4, v4, v5, v6")
        A("v_cmp_eq_u32 vcc, -1, v4")
        A("s_cbranch_vccnz L_hpoll")
        L("L_hok")
        self.stamp(6, True)
        A("v_add_f32 v4, v24, v25")
        A("v_add_f32 v5, v26, v27")
        A("v_add_f32 v6, v28, v29")
        A("v_add_f32 v7, v30, v31")
        A("v_add_f32 v4, v4, v5")
        A("v_add_f32 v6, v6, v7")
        A("v_add_f32 v4, v4, v32")
        A("v_add_f32 v4, v4, v6")
        self.row_reduce("v_add_f32", ["v4"], [1, 2, 4, 8])
        self.cross_rows("v_add_f32", "v4", "v5")
        A(f"v_mul_f32 v4, {f32(1.0/576)}, v4")
        for i in range(9):
            A(f"v_sub_f32 v{36+i}, v{24+i}, v4")
        A("v_mul_f32 v5, v36, v36")
        A("v_mul_f32 v6, v37, v37")
        for i in range(2, 9):
            A(f"v_fmac_f32 v{5 + (i & 1)}, v{36+i}, v{36+i}")
        A("v_add_f32 v5, v5, v6")
        self.row_reduce("v_add_f32", ["v5"], [1, 2, 4, 8])
        self.cross_rows("v_add_f32", "v5", "v6")
        self.ln_scalars("v5", "v4", "v6", "v7", "v8")
        for i in range(9):
            A(f"v_sub_f32 v{36+i}, v{24+i}, v6")
        for i in range(0, 8, 2):
            A(f"v_cvt_pk_bf16_f32 v{24+i}, v{36+i}, v{37+i}")
        A("v_cvt_pk_bf16_f32 v32, v44, v44")
        for i in range(0, 8, 2):
            A(f"v_and_b32 v{25+i}, 0xffff0000, v{24+i}")
            A(f"v_lshlrev_b32 v{24+i}, 16, v{24+i}")
        A("v_lshlrev_b32 v32, 16, v32")
        for i in range(9):
            A(f"v_mul_f32 v{24+i}, v{24+i}, v7")
        for i in range(4):
            A(f"v_cvt_pk_bf16_f32 v{36+i}, v{24+2*i}, v{25+2*i}")
        A("v_cvt_pk_bf16_f32 v40, v32, v32")
        A("s_mul_i32 s10, s3, 1152")
        A(f"s_add_u32 s10, s10, {L_HN}")
        A("v_lshl_add_u32 v4, v1, 3, s10")
        A("v_lshl_add_u32 v5, v1, 1, s10")
        A("ds_write_b64 v4, v[36:37]")
        A("ds_write_b64 v4, v[38:39] offset:512")
        A("ds_write_b16 v5, v40 offset:1024")
        A("s_waitcnt lgkmcnt(0)")
        L("L_mlp_hn")
        A("s_barrier")
        for s in range(13):
            A(f"ds_read_b128 v[{204+4*s}:{207+4*s}], v16 offset:{64*s}")
        def breg(s):
            return 204 + 4 * s if s < 13 else 24 + 4 * (s - 13)
        pend = 13
        for s in range(18):
            if s == 2:
                for s2 in range(13, 15):
                    A(f"ds_read_b128 v[{breg(s2)}:{breg(s2)+3}], v16 offset:{64*s2}")
                    pend += 1
            if s == 5:
                for s2 in range(15, 18):
                    A(f"ds_read_b128 v[{breg(s2)}:{breg(s2)+3}], v16 offset:{64*s2}")
                    pend += 1
            A(f"s_waitcnt lgkmcnt({pend - s - 1})")
            c = "0" if s == 0 else "v[44:47]"
            A(f"v_mfma_f32_16x16x32_bf16 v[44:47], v[{96+4*s}:{99+4*s}], v[{breg(s)}:{breg(s)+3}], {c}")
        self.nop(8)
        A("v_permlane16_swap_b32 v44, v45")
        A("v_permlane16_swap_b32 v46, v47")
        A("v_cvt_pk_bf16_f32 v4, v44, v46")
        A("v_cvt_pk_bf16_f32 v5, v45, v47")
        A("v_lshlrev_b32 v44, 16, v4")
        A("v_and_b32 v46, 0xffff0000, v4")
        A("v_lshlrev_b32 v45, 16, v5")
        A("v_and_b32 v47, 0xffff0000, v5")
        c1 = -2.0 * 0.7978845608028654 * LOG2E
        c2 = c1 * 0.044715
        A(f"s_mov_b32 s10, {f32(c2)}")
        A(f"v_mov_b32 v8, {f32(c1)}")
        A("v_mul_f32 v4, v44, v44")
        A("v_mul_f32 v5, v46, v46")
        A("v_fma_f32 v4, v4, s10, v8")
        A("v_fma_f32 v5, v5, s10, v8")
        A("v_mul_f32 v4, v4, v44")
        A("v_mul_f32 v5, v5, v46")
        A("v_exp_f32 v4, v4")
        A("v_exp_f32 v5, v5")
        A("s_nop 0")
        A("v_add_f32 v4, 1.0, v4")
        A("v_add_f32 v5, 1.0, v5")
        A("v_rcp_f32 v4, v4")
        A("v_rcp_f32 v5, v5")
        A("s_nop 0")
        A("v_mul_f32 v4, v4, v44")
        A("v_mul_f32 v5, v5, v46")
        A("v_cvt_pk_bf16_f32 v4, v4, v5")
        A("v_and_b32 v5, 0xffff0000, v4")
        A("v_lshlrev_b32 v4, 16, v4")
        A("v_mul_f32 v4, v4, v45")
        A("v_mul_f32 v5, v5, v47")
        A("v_cvt_pk_bf16_f32 v4, v4, v5")
        A("ds_write_b16 v18, v4")
        A("ds_write_b16_d16_hi v18, v4 offset:4")
        A("s_waitcnt lgkmcnt(0)")
        A("s_barrier")
        A("ds_read_b128 v[24:27], v17")
        A("s_waitcnt lgkmcnt(0)")
        for t in range(9):
            A(f"v_mfma_f32_16x16x32_bf16 v[{204+4*t}:{207+4*t}], v[{168+4*t}:{171+4*t}], v[24:27], 0")
        for t in range(9):
            A(f"buffer_store_dwordx4 v[{204+4*t}:{207+4*t}], v19, s[56:59], s12 offen sc1")
            if t < 8:
                A(f"s_add_u32 s12, s12, {144*64}")
        self.stamp(7, True)
        if p["STAMPS"]:
            A("s_cmp_lg_u32 s3, 0")
            A("s_cbranch_scc1 L_end")
            self.store_stamps([0, 1, 2, 3, 4] + ([5, 6, 7] if p['DIAG'] < 2 else []))
        A("s_endpgm")

    def poll_sum(self, name, nld, sbase):
        A, L = self.A, self.L
        A(f"s_add_u32 s13, {sbase}, 4096")
        A(f"s_add_u32 s14, {sbase}, 8192")
        A("s_mov_b32 s11, 0")
        L(f"L_{name}_poll")
        for i in range(nld):
            so = [sbase, "s13", "s14"][i // 4]
            A(f"buffer_load_dwordx4 v[{96+4*i}:{99+4*i}], v20, s[56:59], {so} offen offset:{1024*(i%4)} sc1")
        A("s_add_u32 s11, s11, 1")
        A(f"s_cmp_ge_u32 s11, {SPIN}")
        A("s_waitcnt vmcnt(0)")
        A(f"s_cbranch_scc1 L_{name}_ok")
        regs = [f"v{96+i}" for i in range(4 * nld)]
        A(f"v_max3_u32 v4, {regs[0]}, {regs[1]}, {regs[2]}")
        A(f"v_max_u32 v5, {regs[3]}, {regs[3]}")
        k = 0
        for i in range(4, 4 * nld, 2):
            t = "v4" if k % 2 == 0 else "v5"
            A(f"v_max3_u32 {t}, {t}, {regs[i]}, {regs[i+1]}")
            k += 1
        A("v_max_u32 v4, v4, v5")
        A("v_cmp_eq_u32 vcc, -1, v4")
        A(f"s_cbranch_vccnz L_{name}_poll")
        L(f"L_{name}_ok")
        n = nld
        cur = list(range(nld))
        while len(cur) > 1:
            nxt = []
            for i in range(0, len(cur) - 1, 2):
                a, b = cur[i], cur[i + 1]
                for r in range(4):
                    A(f"v_add_f32 v{96+4*a+r}, v{96+4*a+r}, v{96+4*b+r}")
                nxt.append(a)
            if len(cur) % 2:
                nxt.append(cur[-1])
            cur = nxt
        self.nop(2)
        A("v_permlane32_swap_b32 v96, v97")
        A("v_permlane32_swap_b32 v98, v99")
        A("v_add_f32 v96, v96, v97")
        A("v_add_f32 v98, v98, v99")
        self.nop(2)
        A("v_permlane16_swap_b32 v96, v98")
        A("v_add_f32 v4, v96, v98")
        self.row_reduce("v_add_f32", ["v4"], [4, 8])

    def red(self):
        p = self.p
        A, L, V = self.A, self.L, self.V
        L("L_red")
        A("s_mul_i32 s15, s9, 9")
        A("s_add_u32 s15, s15, s8")
        A("s_sub_u32 s15, s15, 18")
        self.srd(64, "s16", "s17", 2304)
        self.srd(68, "s34", "s35", 2304)
        A("v_and_b32 v4, 3, v1")
        A("v_lshlrev_b32 v4, 2, v4")
        A("v_and_b32 v5, 1, v10")
        A("v_lshl_add_u32 v4, v5, 1, v4")
        A("v_lshrrev_b32 v5, 1, v10")
        A("v_add_u32 v4, v4, v5")
        A("s_lshl_b32 s10, s15, 4")
        A("v_add_u32 v4, s10, v4")
        A(f"v_mov_b32 v5, {OOB}")
        A("v_cmp_gt_u32 vcc, 4, v11")
        A("v_lshlrev_b32 v6, 1, v4")
        A("v_lshlrev_b32 v7, 2, v4")
        A("v_cndmask_b32 v22, v5, v6, vcc")
        A("v_cndmask_b32 v23, v5, v7, vcc")
        A("buffer_load_ushort v21, v22, s[64:67], 0 offen")
        A("v_lshlrev_b32 v20, 4, v1")
        A("s_lshl_b32 s12, s15, 13")
        A(f"s_add_u32 s12, s12, {WS_Y1}")
        self.poll_sum("r1", 8, "s12")
        self.stamp(5, True)
        self.round_bf16("v4", "v4")
        A("v_lshlrev_b32 v21, 16, v21")
        A("v_add_f32 v4, v4, v21")
        self.round_bf16("v21", "v4")
        A(f"s_mov_b32 s10, {WS_H}")
        A("buffer_store_dword v21, v23, s[56:59], s10 offen sc1")
        self.stamp(6, True)
        A("s_mul_i32 s12, s15, 9216")
        A(f"s_add_u32 s12, s12, {WS_Y2}")
        self.poll_sum("r3", 9, "s12")
        self.round_bf16("v4", "v4")
        A("v_add_f32 v4, v4, v21")
        A("v_cvt_pk_bf16_f32 v4, v4, v4")
        A("buffer_store_short v4, v22, s[68:71], 0 offen")
        self.stamp(7, True)
        self.store_stamps([0, 1, 2, 3, 4] + ([5, 6, 7] if p['DIAG'] < 2 else []))
        A("s_endpgm")

    def clear_stores(self):
        A = self.A
        for i in range(4):
            A(f"v_mov_b32 v{36+i}, -1")
        A("s_mul_i32 s10, s2, 5120")
        A("s_add_u32 s11, s10, 4096")
        for i in range(4):
            A(f"buffer_store_dwordx4 v[36:39], v20, s[56:59], s10 offen offset:{1024*i} sc1")
        A("buffer_store_dwordx4 v[36:39], v20, s[56:59], s11 offen sc1")

    def aux(self):
        p = self.p
        A, L, V = self.A, self.L, self.V
        self.vm = 0
        L("L_aux")
        A("s_sub_u32 s3, s3, 4")
        A(f"s_setprio {p['AUXPRIO0']}")
        A("v_lshlrev_b32 v2, 13, v10")
        A("v_lshl_add_u32 v2, v11, 4, v2")
        A("v_lshl_add_u32 v3, v11, 2, v10")
        A("s_mul_i32 s10, s3, 144")
        A("v_add_u32 v3, s10, v3")
        A("v_lshlrev_b32 v3, 1, v3")
        A("v_lshlrev_b32 v20, 4, v1")
        A("s_mul_i32 s11, s6, 1152")
        A(f"s_mul_i32 s14, s3, {144*8192}")
        A("s_lshl_b32 s12, s4, 8")
        A("s_add_u32 s14, s14, s12")
        A("s_waitcnt lgkmcnt(0)")
        A("s_add_u32 s12, s16, s11")
        A("s_addc_u32 s13, s17, 0")
        self.srd(64, "s12", "s13", 1152)
        self.srd(40, "s22", "s23", 0 if p["SKIP"] & 2 else 576 * 8192)
        self.srd(56, "s38", "s39", WS_SIZE)
        xa = V("buffer_load_dwordx4 v[24:27], v20, s[64:67], 0 offen")
        xb = V("buffer_load_dwordx4 v[28:31], v20, s[64:67], 0 offen offset:1024")
        for k in range(3):
            xg = V(f"buffer_load_ushort v{16+k}, v3, s[64:67], 0 offen offset:{128*k}")
        wl = []

        land = [0]

        def wq_tick(paced=True):
            u = len(wl)
            if u >= 36:
                return
            lim = p["LA"]
            if paced and self.vm - land[0] > lim - 1:
                A(f"s_waitcnt vmcnt({lim-1})")
                land[0] = self.vm - (lim - 1)
            wl.append(V(f"buffer_load_dwordx4 v[{96+4*u}:{99+4*u}], v2, s[40:43], s14 offen {p['WPOL']}"))
            if u < 35:
                A(f"s_add_u32 s14, s14, {4*8192}")
        for _ in range(p["LA"]):
            wq_tick(False)
        self.srd(44, "s24", "s25", 0 if p["SKIP"] & 1 else 4096 * 1152)
        self.masks()
        if p["DIAG"] == 3:
            self.stamp(9)
        self.wait_vm(xg)
        land[0] = xg
        if p["DIAG"] == 3:
            self.stamp(5)
        for i in range(8):
            A(f"v_lshlrev_b32 v{40+2*i}, 16, v{24+i}")
            A(f"v_and_b32 v{41+2*i}, 0xffff0000, v{24+i}")
        A("v_add_f32 v4, v40, v41")
        A("v_add_f32 v5, v42, v43")
        for i in range(4, 16):
            A(f"v_add_f32 v{4+(i&1)}, v{4+(i&1)}, v{40+i}")
        A("v_add_f32 v4, v4, v5")
        wq_tick()
        self.row_reduce("v_add_f32", ["v4"], [1, 2, 4, 8])
        self.cross_rows("v_add_f32", "v4", "v5")
        A(f"v_mul_f32 v4, {f32(1.0/576)}, v4")
        wq_tick()
        for i in range(16):
            A(f"v_sub_f32 v{40+i}, v{40+i}, v4")
        A("v_mul_f32 v5, v40, v40")
        for i in range(1, 8):
            A(f"v_fmac_f32 v5, v{40+i}, v{40+i}")
        A("v_mul_f32 v6, v48, v48")
        for i in range(9, 16):
            A(f"v_fmac_f32 v6, v{40+i}, v{40+i}")
        A("v_cmp_gt_u32 vcc, 8, v1")
        A("s_nop 1")
        A("v_cndmask_b32 v6, 0, v6, vcc")
        A("v_add_f32 v5, v5, v6")
        wq_tick()
        self.row_reduce("v_add_f32", ["v5"], [1, 2, 4, 8])
        self.cross_rows("v_add_f32", "v5", "v6")
        wq_tick()
        self.ln_scalars("v5", "v4", "v6", "v7", "v8")
        for k in range(3):
            A(f"v_lshlrev_b32 v{16+k}, 16, v{16+k}")
            A(f"v_sub_f32 v{16+k}, v{16+k}, v6")
            self.round_bf16(f"v{16+k}", f"v{16+k}")
            A(f"v_mul_f32 v{16+k}, v{16+k}, v7")
            A(f"v_cvt_pk_bf16_f32 v{16+k}, v{16+k}, v{16+k}")
        if p["DIAG"] == 3:
            self.stamp(6)
        u = 0
        while u < 36:
            wq_tick()
            did = 0
            while u < 36 and did < 2 and (len(wl) == 36 or (u < len(wl) and wl[u] <= land[0])):
                a = 48 + 4 * (u & 1)
                for r in range(4):
                    self.dpp("v_and_b32", f"v{a+r}", f"v{16 + u // 16}", f"v{32+r}", f"row_newbcast:{u % 16}")
                if wl[u] > land[0]:
                    self.wait_vm(wl[u])
                    land[0] = wl[u]
                c = "0" if u == 0 else "v[44:47]"
                A(f"v_mfma_f32_16x16x32_bf16 v[44:47], v[{a}:{a+3}], v[{96+4*u}:{99+4*u}], {c}")
                u += 1
                did += 1
        A("v_lshlrev_b32 v4, 5, v11")
        A("v_lshl_add_u32 v4, v10, 4, v4")
        A("s_lshl_b32 s10, s3, 9")
        A(f"s_add_u32 s10, s10, {L_QP}")
        A("v_add_u32 v4, s10, v4")
        self.nop(4)
        A("s_mov_b64 exec, 0xffffffff")
        A("ds_write_b128 v4, v[44:47]")
        A("s_mov_b64 exec, -1")
        A("s_waitcnt lgkmcnt(0)")
        if p["DIAG"] == 3:
            self.stamp(7)
        A("s_barrier")
        A(f"s_setprio {p['AUXPRIO']}")
        lskip = self.lab("noarr")
        NC = p["CLR"]
        A(f"s_cmp_lg_u32 s3, {9 if p['SKIP'] & 4 else 0}")
        A(f"s_cbranch_scc1 {lskip}")
        if NC < 256:
            A(f"s_cmp_lt_u32 s2, {256 - NC}")
            A(f"s_cbranch_scc1 {lskip}")
        A(f"s_setprio {p['CLRPRIO']}")
        for i in range(4):
            A(f"v_mov_b32 v{36+i}, -1")
        A(f"s_sub_u32 s11, s2, {256 - NC}")
        per = WS_CLR // NC
        assert per % 1024 == 0 and per * NC == WS_CLR
        A(f"s_mul_i32 s10, s11, {per}")
        for k in range(per // 1024):
            A(f"buffer_store_dwordx4 v[36:39], v20, s[56:59], s10 offen offset:{1024*(k%4)} sc1")
            if k % 4 == 3:
                A("s_add_u32 s10, s10, 4096")
        if NC < 256:
            A("s_lshl_b32 s11, s11, 2")
        A("v_mov_b32 v4, s11")
        A("v_mov_b32 v5, 1")
        A("s_waitcnt vmcnt(0)")
        A("s_mov_b64 exec, 1")
        A(f"global_store_{'byte' if NC == 256 else 'dword'} v4, v5, s[36:37] sc1")
        A("s_mov_b64 exec, -1")
        A(f"s_setprio {p['AUXPRIO']}")
        L(lskip)
        for i in range(9):
            A(f"v_add_u32 v4, {64*i}, v1")
            A("v_mul_u32_u24 v5, 3641, v4")
            A("v_lshrrev_b32 v5, 16, v5")
            A("v_mul_u32_u24 v6, 18, v5")
            A("v_sub_u32 v6, v4, v6")
            A("v_mul_u32_u24 v5, 1152, v5")
            A(f"v_lshl_add_u32 v{40+i}, v6, 4, v5")
        A(f"s_mul_i32 s10, s4, {128*1152}")
        A("s_mul_i32 s11, s3, 288")
        A("s_add_u32 s10, s10, s11")
        A("s_mul_i32 s12, s3, 9216")
        A(f"s_add_u32 s12, s12, {L_WOS}")
        A("v_lshrrev_b32 v4, 2, v1")
        A("v_and_b32 v4, 3, v4")
        A("v_lshl_add_u32 v4, v10, 3, v4")
        A("v_mul_u32_u24 v4, 288, v4")
        A("v_and_b32 v5, 3, v1")
        A("v_lshl_add_u32 v4, v5, 3, v4")
        A("v_add_u32 v7, s12, v4")
        for s in range(4):
            if p["DIAG"] == 2 and s == 0:
                self.stamp(5)
            for i in range(9):
                A(f"s_add_u32 m0, s12, {1024*i}")
                if i >= p["LA2"]:
                    A(f"s_waitcnt vmcnt({p['LA2']-1})")
                A(f"buffer_load_dwordx4 v{40+i}, s[44:47], s10 offen {p['WPOL']} lds")
            if p["DIAG"] == 2 and s == 0:
                self.stamp(6)
            A("s_waitcnt vmcnt(0)")
            if p["DIAG"] == 2 and s == 0:
                self.stamp(7)
            for t in range(9):
                r = 96 + 4 * (s * 9 + t)
                A(f"ds_read_b64_tr_b16 v[{r}:{r+1}], v7 offset:{32*t}")
                A(f"ds_read_b64_tr_b16 v[{r+2}:{r+3}], v7 offset:{32*t + 1152}")
            A("s_waitcnt lgkmcnt(0)")
            if p["DIAG"] == 2 and s == 0:
                self.stamp(9)
            if s < 3:
                A(f"s_add_u32 s10, s10, {32*1152}")
        if p["DIAG"] >= 1:
            self.stamp(8)
        A("v_and_b32 v4, 3, v1")
        A("v_lshlrev_b32 v4, 8, v4")
        A("v_lshl_add_u32 v4, v10, 4, v4")
        A(f"v_add_u32 v16, {L_OP}, v4")
        A("v_lshlrev_b32 v4, 4, v10")
        A(f"v_mov_b32 v5, {OOB}")
        A("v_cmp_eq_u32 vcc, 0, v11")
        A("s_mul_i32 s12, s6, 36")
        A("s_mul_i32 s11, s3, 9")
        A("v_cndmask_b32 v17, v5, v4, vcc")
        A("s_add_u32 s12, s12, s11")
        A("s_lshl_b32 s12, s12, 7")
        A("s_lshl_b32 s11, s4, 2")
        A("s_add_u32 s12, s12, s11")
        A("s_add_u32 s12, s12, s5")
        A("s_lshl_b32 s12, s12, 6")
        A(f"s_add_u32 s12, s12, {WS_Y1}")
        A("s_setprio 3")
        A("s_barrier")
        for s in range(4):
            A(f"ds_read_b128 v[{20+4*s}:{23+4*s}], v16 offset:{64*s}")

        def post(t):
            d = 40 + 4 * t
            for r in range(4):
                self.dpp("v_add_f32", f"v{d+r}", f"v{d+r}", f"v{d+r}", "quad_perm:[1,0,3,2]")
            for r in range(4):
                self.dpp("v_add_f32", f"v{d+r}", f"v{d+r}", f"v{d+r}", "quad_perm:[2,3,0,1]")
            A(f"buffer_store_dwordx4 v[{d}:{d+3}], v17, s[56:59], s12 offen sc1")
            if t < 8:
                A("s_add_u32 s12, s12, 8192")

        for t in range(9):
            d = 40 + 4 * t
            for s in range(4):
                if t == 0:
                    A(f"s_waitcnt lgkmcnt({3-s})")
                r = 96 + 4 * (s * 9 + t)
                c = "0" if s == 0 else f"v[{d}:{d+3}]"
                A(f"v_mfma_f32_16x16x32_bf16 v[{d}:{d+3}], v[{r}:{r+3}], v[{20+4*s}:{23+4*s}], {c}")
            if t >= 2:
                post(t - 2)
        post(7)
        post(8)
        if p["STAMPS"]:
            self.stamp(8, True)
            A("s_cmp_lg_u32 s3, 0")
            A("s_cbranch_scc1 L_end")
            self.store_stamps([[8], [8], [5, 6, 7, 8, 9], [5, 6, 7, 8, 9]][p['DIAG']])
        A("s_endpgm")


def main():
    args = sys.argv[1:]
    out = args[0]
    kw = {}
    for a in args[1:]:
        k, v = a.split("=")
        try:
            v = int(v)
        except ValueError:
            pass
        kw[k] = v
    assert all((p * 3641) >> 16 == p // 18 for p in range(576))
    open(out, "w").write(Gen(**kw).gen())


if __name__ == "__main__":
    main()
```
